```python
import torch

def _softmax(x, axis=-1):
    return torch.softmax(x, dim=axis)
def _gelu(x):
    return torch.nn.functional.gelu(x, approximate="tanh")
def _silu(x):
    return torch.nn.functional.silu(x)
def _sigmoid(x):
    return torch.sigmoid(x)
def _layernorm(x, axis=-1, eps=1e-5):
    m = x.mean(dim=axis, keepdim=True)
    v = x.var(dim=axis, keepdim=True, unbiased=False)
    return (x - m) / torch.sqrt(v + eps)
def _scatter_add(tgt, idx, src, axis=0):
    return tgt.clone().index_add_(axis, idx, src)
def _segment_sum(src, seg, n):
    out = torch.zeros((n,) + src.shape[1:], dtype=src.dtype)
    return out.index_add_(0, seg, src)
def _pad(x, pw):
    flat = tuple(v for pair in reversed(pw) for v in pair)
    return torch.nn.functional.pad(x, flat)

kernel_name = 'interleave_layers__ssm_conv_s4__swiglu_ffn__prompt'

def setup_inputs():

    _w = (lambda a: (lambda t: t.to(torch.bfloat16) if t.is_floating_point() else t)(torch.as_tensor(a)))
    def _A_setup():
        B, L, D, N = 1, 2048, 512, 128
        A_re = -(lambda _x: torch.exp(torch.as_tensor(_x)))((lambda *s: torch.randn(*s, dtype=torch.bfloat16) * 1.6)(D, N))
        A_im = torch.pi * (lambda *s: torch.randn(*s, dtype=torch.bfloat16) * 0.2)(D, N)
        B_re = (lambda *s: torch.randn(*s, dtype=torch.bfloat16) * 0.2)(D, N)
        B_im = (lambda *s: torch.randn(*s, dtype=torch.bfloat16) * 0.2)(D, N)
        C_re = (lambda *s: torch.randn(*s, dtype=torch.bfloat16) * 0.2)(D, N)
        C_im = (lambda *s: torch.randn(*s, dtype=torch.bfloat16) * 0.2)(D, N)
        log_dt = (lambda *s: torch.randn(*s, dtype=torch.bfloat16) * 0.2)(D) * 0.5 - 4.0
        Dskip = (lambda *s: torch.randn(*s, dtype=torch.bfloat16) * 0.2)(D)
        return {
            "u": _w((lambda *s: torch.randn(*s, dtype=torch.bfloat16) * 0.05)(B, L, D)),
            "A_re": _w(A_re),
            "A_im": _w(A_im),
            "B_re": _w(B_re),
            "B_im": _w(B_im),
            "C_re": _w(C_re),
            "C_im": _w(C_im),
            "log_dt": _w(log_dt),
            "Dskip": _w(Dskip),
        }
    _A_in = _A_setup()

    def _B_setup():
        B, S, D, F = 1, 2048, 512, 1376
        return {
            "x": _w((lambda *s: torch.randn(*s, dtype=torch.bfloat16) * 0.05)(B, S, D)),
            "w_gate": _w((lambda *s: torch.randn(*s, dtype=torch.bfloat16) * 0.05)(D, F)),
            "w_up": _w((lambda *s: torch.randn(*s, dtype=torch.bfloat16) * 0.05)(D, F)),
            "w_down": _w((lambda *s: torch.randn(*s, dtype=torch.bfloat16) * 0.05)(F, D)),
        }
    _B_in = _B_setup()

    return {
        "A_u": _A_in["u"],
        "A_A_re": _A_in["A_re"],
        "A_A_im": _A_in["A_im"],
        "A_B_re": _A_in["B_re"],
        "A_B_im": _A_in["B_im"],
        "A_C_re": _A_in["C_re"],
        "A_C_im": _A_in["C_im"],
        "A_log_dt": _A_in["log_dt"],
        "A_Dskip": _A_in["Dskip"],
        "B_x": _B_in["x"],
        "B_w_gate": _B_in["w_gate"],
        "B_w_up": _B_in["w_up"],
        "B_w_down": _B_in["w_down"],
    }

def reference(A_u, A_A_re, A_A_im, A_B_re, A_B_im, A_C_re, A_C_im, A_log_dt, A_Dskip, B_x, B_w_gate, B_w_up, B_w_down):
    def _A_ref(u, A_re, A_im, B_re, B_im, C_re, C_im, log_dt, Dskip):
        Bsz, L, D = u.shape
        dt = torch.exp(log_dt)[:, None]
        A = A_re + 1j * A_im
        Bc = B_re + 1j * B_im
        Cc = C_re + 1j * C_im
        logdA = dt * A
        dB = dt * Bc
        l = (lambda x, dt: x.to(dt))(torch.arange(L), A_re.dtype)
        P = torch.exp(logdA[:, :, None] * l[None, None, :])
        K = torch.einsum("dn,dnl,dn->dl", Cc, P, dB).real
        L2 = 2 * L
        Kp = _pad(K, ((0, 0), (0, L)))
        up = (lambda x, *d: x.permute(*d))(u, 0, 2, 1)
        up = _pad(up, ((0, 0), (0, 0), (0, L)))
        Kf = (lambda x, axes=(-2,-1): torch.fft.rfft2(x.float(), dim=axes))(Kp[:, None, :], axes=(-2, -1))
        Uf = (lambda x, axes=(-2,-1): torch.fft.rfft2(x.float(), dim=axes))(up[:, :, None, :], axes=(-2, -1))
        Yf = Uf * Kf[None, :, :, :]
        y = (lambda x, s, axes=(-2,-1): torch.fft.irfft2(x, s=s, dim=axes).to(torch.bfloat16))(Yf, (1, L2), axes=(-2, -1))[:, :, 0, :L]
        y = (lambda x, *d: x.permute(*d))(y, 0, 2, 1) + u * Dskip[None, None, :]
        return y

    def _B_ref(x, w_gate, w_up, w_down):
        g = _silu(x @ w_gate)
        u = x @ w_up
        return (g * u) @ w_down

    x = A_u
    x = x + _A_ref(_layernorm(x, axis=-1), A_A_re, A_A_im, A_B_re, A_B_im, A_C_re, A_C_im, A_log_dt, A_Dskip)
    x = x + _B_ref(_layernorm(x, axis=-1), B_w_gate, B_w_up, B_w_down)
    x = x + _A_ref(_layernorm(x, axis=-1), A_A_re, A_A_im, A_B_re, A_B_im, A_C_re, A_C_im, A_log_dt, A_Dskip)
    x = x + _B_ref(_layernorm(x, axis=-1), B_w_gate, B_w_up, B_w_down)
    return x
```

```python
import re

REG = re.compile(r"^-?(?:abs\()?\|?([vsa])(?:(\d+)|\[(\d+):(\d+)\])\)?\|?$")
TRANS = ("v_exp_f32", "v_log_f32", "v_rcp_f32", "v_rsq_f32", "v_sqrt_f32", "v_sin_f32", "v_cos_f32", "v_rcp_iflag_f32",
         "v_exp_f16", "v_rcp_f16")

def regs_of(tok):
    tok = tok.strip()
    if tok == "vcc": return {("s", 106), ("s", 107)}
    if tok == "vcc_lo": return {("s", 106)}
    if tok == "exec": return {("s", 126), ("s", 127)}
    if tok == "m0": return {("s", 124)}
    m = REG.match(tok)
    if not m: return set()
    f = m.group(1)
    if m.group(2) is not None: return {(f, int(m.group(2)))}
    return {(f, i) for i in range(int(m.group(3)), int(m.group(4)) + 1)}

def split_ops(s):
    out, depth, cur = [], 0, ""
    for ch in s:
        if ch in "[(": depth += 1
        if ch in "])": depth -= 1
        if ch == "," and depth == 0:
            out.append(cur.strip()); cur = ""
        else: cur += ch
    if cur.strip(): out.append(cur.strip())
    return out

class I:
    def __init__(self, text):
        self.text = text
        t = text.split(";")[0].strip()
        self.label = t[:-1] if t.endswith(":") else None
        self.dir = t.startswith(".") or not t
        self.mn = ""; self.rd = set(); self.wr = set(); self.kind = "other"; self.states = 1
        self.A = self.B = self.C = set(); self.passes = 0; self.xdl = False; self.dpp = False
        self.sdata = set(); self.target = None
        if self.label or self.dir:
            self.states = 0; return
        parts = t.split(None, 1)
        mn = self.mn = parts[0]
        rest = parts[1] if len(parts) > 1 else ""
        ops = split_ops(rest)
        mods = ""
        if ops:
            lp = ops[-1].split()
            if len(lp) > 1:
                ops[-1] = lp[0]; mods = " ".join(lp[1:])
        self.mods = mods
        R = [regs_of(o) for o in ops]
        if mn == "s_nop":
            self.states = int(ops[0], 0) + 1; self.kind = "nop"
        elif mn.startswith("s_cbranch") or mn == "s_branch":
            self.kind = "branch"; self.target = ops[0]
        elif mn.startswith("v_mfma"):
            self.kind = "mfma"; self.wr = R[0]; self.A = R[1]; self.B = R[2]; self.C = R[3] if len(R) > 3 else set()
            self.rd = self.A | self.B | self.C
            if "16x16x32" in mn: self.passes, self.xdl = 4, True
            elif "32x32x16" in mn: self.passes, self.xdl = 8, True
            elif "16x16x4_f32" in mn: self.passes, self.xdl = 8, False
            elif "32x32x2_f32" in mn: self.passes, self.xdl = 16, False
            else: raise ValueError(mn)
        elif mn.startswith("v_"):
            self.kind = "valu"
            if mn.startswith("v_permlane") and "swap" in mn:
                self.wr = R[0] | R[1]; self.rd = R[0] | R[1]; self.kind = "permlane"
            elif mn in ("v_add_co_u32", "v_sub_co_u32", "v_addc_co_u32", "v_subrev_co_u32"):
                self.wr = R[0] | R[1]; self.rd = set().union(*R[2:])
            else:
                self.wr = R[0]; self.rd = set().union(*R[1:]) if len(R) > 1 else set()
                if mn.startswith("v_dot"): self.ab = R[1] | R[2]
                if mn.startswith(("v_fmac", "v_dot2c", "v_pk_fmac")): self.rd |= R[0]
                if mn.startswith("v_cndmask") and len(ops) == 3: self.rd |= regs_of("vcc")
            if any(k in mods for k in ("quad_perm", "row_", "wave_")): self.dpp = True
        elif mn.startswith("ds_"):
            self.kind = "ds"
            if mn.startswith(("ds_read", "ds_bpermute", "ds_permute", "ds_swizzle")):
                self.wr = R[0]; self.rd = set().union(*R[1:])
                if "d16" in mn: self.rd |= R[0]
            else:
                self.rd = set().union(*R)
        elif mn.startswith(("buffer_", "global_")):
            self.kind = "vmem"
            isload = "_load" in mn
            if mn.startswith("buffer_"):
                if isload and " lds" in (" " + mods):
                    self.rd = set().union(*R)
                elif isload:
                    self.wr = R[0]; self.rd = set().union(*R[1:])
                else:
                    self.rd = set().union(*R) if R else set()
                    if mn.endswith(("x3", "x4")): self.sdata = R[0]
            else:
                if isload and "lds" not in mn:
                    self.wr = R[0]; self.rd = set().union(*R[1:])
                else:
                    self.rd = set().union(*R) if R else set()
                    if mn.endswith(("x3", "x4")) and "store" in mn: self.sdata = R[1]
            self.lds_dma = (" lds" in (" " + mods)) or ("lds" in mn)
        elif mn.startswith("s_"):
            self.kind = "salu"
            if R and not mn.startswith(("s_cmp", "s_waitcnt", "s_barrier", "s_endpgm", "s_bitcmp", "s_setprio", "s_sleep")):
                self.wr = R[0]; self.rd = set().union(*R[1:]) if len(R) > 1 else set()
                if "saveexec" in mn: self.wr = self.wr | regs_of("exec")
        self.trans = mn.split("_e")[0] in TRANS

def need(p, c):
    n = 0
    valu_p = p.kind in ("valu", "permlane")
    valu_c = c.kind in ("valu", "permlane")
    if valu_p:
        sw = {r for r in p.wr if r[0] == "s"}
        vw = {r for r in p.wr if r[0] in "va"}
        if sw:
            if (valu_c or c.kind == "mfma") and (sw & c.rd): n = max(n, 2)
            if c.mn.startswith(("v_readlane", "v_writelane")) and (sw & c.rd): n = max(n, 4)
            if c.kind == "vmem" and (sw & c.rd): n = max(n, 5)
        if vw:
            if c.dpp and (vw & c.rd): n = max(n, 2)
            if c.kind == "permlane" and (vw & c.rd): n = max(n, 2)
            if c.mn.startswith(("v_readfirstlane", "v_readlane")) and (vw & c.rd): n = max(n, 1)
            if c.kind == "mfma" and (vw & c.rd): n = max(n, 2)
            if p.trans and valu_c and not c.trans and (vw & c.rd): n = max(n, 1)
            if p.trans and c.kind == "mfma" and (vw & c.rd): n = max(n, 2)
            if p.mn.startswith("v_dot") and (vw & (c.rd | c.wr)) and not (c.mn == p.mn and c.kind == "valu" and not (vw & getattr(c, "ab", set()))): n = max(n, 3)
            if ("dst_sel" in p.mods or "op_sel" in p.mods) and valu_c and (vw & (c.rd | c.wr)): n = max(n, 1)
    if p.kind == "mfma":
        D = p.wr
        idx = {2: 0, 4: 1, 8: 2, 16: 3}[p.passes]
        if c.kind == "mfma":
            if D & (c.A | c.B): n = max(n, ([5, 8, 12, 20] if p.xdl else [4, 6, 10, 18])[idx])
            if D & c.C:
                if c.C == D and c.passes == p.passes and c.xdl == p.xdl: n = max(n, [2, 0, 0, 0][idx])
                elif p.xdl: n = max(n, ([4, 6, 10, 18] if c.xdl else [3, 6, 10, 18])[idx])
                else: n = max(n, (0 if c.xdl else [2, 4, 8, 16][idx]))
            elif D & c.wr: n = max(n, [4, 6, 10, 18][idx])
        elif c.kind in ("valu", "permlane", "ds", "vmem"):
            if D & (c.rd | c.wr): n = max(n, ([5, 8, 12, 20] if p.xdl else [4, 6, 10, 18])[idx])
            if p.xdl and valu_c and (p.C & c.wr): n = max(n, [1, 3, 7, 15][idx])
    if p.kind == "vmem" and p.sdata:
        if (p.sdata & c.wr): n = max(n, 2 if valu_c else 1)
    if p.kind == "salu" and ("s", 124) in p.wr and c.kind == "vmem" and getattr(c, "lds_dma", False): n = max(n, 1)
    return n

WINDOW = 21

def fix(lines):
    ins = [I(l) for l in lines]
    changed = True
    rounds = 0
    while changed and rounds < 6:
        changed = False; rounds += 1
        out = []
        labels = {x.label: i for i, x in enumerate(ins) if x.label}
        for idx, c in enumerate(ins):
            if c.states == 0 and c.kind == "other":
                out.append(c); continue
            def req(seq, cons, dist0=0):
                d = dist0; worst = 0
                for p in reversed(seq):
                    if d >= WINDOW: break
                    if p.states == 0: continue
                    if p.mn in ("s_endpgm", "s_branch"): break
                    w = need(p, cons)
                    if w > d: worst = max(worst, w - d)
                    d += p.states
                return worst
            w = req(out, c)
            if c.kind == "branch" and c.target in labels:
                d = 1
                for q in ins[labels[c.target]:labels[c.target] + 60]:
                    if q.states == 0: continue
                    if d >= WINDOW: break
                    w = max(w, req(out, q, d))
                    d += q.states
                    if q.mn in ("s_endpgm", "s_branch"): break
            while w > 0:
                k = min(w, 16)
                out.append(I(f"    s_nop {k-1}    ; hz")); w -= k; changed = True
            out.append(c)
        ins = out
    return [x.text for x in ins]
```

```python
import struct, sys, math

def f32bits(x):
    return struct.unpack("<I", struct.pack("<f", x))[0]

XT0 = 0x000000
XT1 = 0x200000
XT2 = 0x400000
XT3 = 0x600000
ST0 = 0x800000
ST2 = 0x810000
KT  = 0x900000
WGU = 0xC00000
WD  = 0x1000000
HF  = 0x1200000
WS_BYTES = 268435456

LOG2E = 1.4426950408889634
INV2PI = 1.0 / (2 * math.pi)
C1 = struct.unpack("<f", struct.pack("<f", INV2PI))[0]
C2 = INV2PI - C1

class A:
    def __init__(self):
        self.l = []
    def __call__(self, s):
        for line in s.strip("\n").split("\n"):
            self.l.append("    " + line.strip() if not line.strip().endswith(":") else line.strip())
    def label(self, s):
        self.l.append(s + ":")
    def text(self):
        import hazard
        return "\n".join(hazard.fix(self.l)) + "\n"

def srd(a, d, lo, hi, nbytes):
    a(f"""s_mov_b32 s{d}, s{lo}
s_mov_b32 s{d+1}, s{hi}
s_mov_b32 s{d+2}, {nbytes}
s_mov_b32 s{d+3}, 0x00020000""")

def kernel_head(a, name):
    a.l.append(f".globl {name}")
    a.l.append(".p2align 8")
    a.l.append(f".type {name},@function")
    a.l.append(f"{name}:")

def kd(name, vgpr, sgpr=96, accum=None):
    accum = accum if accum is not None else (vgpr + 3) // 4 * 4
    return f""".p2align 6
.amdhsa_kernel {name}
  .amdhsa_next_free_vgpr {vgpr}
  .amdhsa_next_free_sgpr {sgpr}
  .amdhsa_accum_offset {accum}
  .amdhsa_group_segment_fixed_size 0
  .amdhsa_kernarg_size 128
  .amdhsa_user_sgpr_count 2
  .amdhsa_user_sgpr_kernarg_segment_ptr 1
  .amdhsa_system_sgpr_workgroup_id_x 1
.end_amdhsa_kernel
"""

N_KGEN = 256
N_XP = 32
N_WGU = 240
N_WD = 86
PREP_WGS = N_KGEN + N_XP + N_WGU + N_WD
PREP_LDS = 69632

def gen_prep(a):
    kernel_head(a, "prep_kernel")
    a(f"""
s_load_dwordx2 s[22:23], s[0:1], 120
s_cmp_ge_u32 s2, {PREP_WGS}
s_cbranch_scc1 L_prep_end
s_cmp_ge_u32 s2, {N_KGEN}
s_cbranch_scc1 L_prep_notk
""")
    a(f"""
s_load_dwordx8 s[8:15], s[0:1], 8
s_load_dwordx4 s[16:19], s[0:1], 40
s_load_dwordx2 s[20:21], s[0:1], 56
v_lshrrev_b32 v1, 8, v0                 ; ch
v_and_b32 v2, 127, v0                   ; n
s_lshl_b32 s3, s2, 1
v_add_u32 v3, s3, v1                    ; d
v_lshlrev_b32 v4, 7, v3
v_add_u32 v4, v4, v2
v_lshlrev_b32 v4, 1, v4                 ; (d*128+n)*2
v_lshlrev_b32 v5, 1, v3                 ; d*2
s_waitcnt lgkmcnt(0)
global_load_ushort v10, v4, s[8:9]
global_load_ushort v11, v4, s[10:11]
global_load_ushort v12, v4, s[12:13]
global_load_ushort v13, v4, s[14:15]
global_load_ushort v14, v4, s[16:17]
global_load_ushort v15, v4, s[18:19]
global_load_ushort v16, v5, s[20:21]
""")
    srd(a, 24, 22, 23, WS_BYTES)
    a(f"""
s_mov_b32 s30, {f32bits(LOG2E):#x}
s_mov_b32 s31, {f32bits(C1):#x}
s_mov_b32 s32, {f32bits(C2):#x}
v_lshlrev_b32 v6, 11, v1
v_lshl_add_u32 v6, v2, 4, v6
s_waitcnt vmcnt(0)
v_lshlrev_b32 v10, 16, v10
v_lshlrev_b32 v11, 16, v11
v_lshlrev_b32 v12, 16, v12
v_lshlrev_b32 v13, 16, v13
v_lshlrev_b32 v14, 16, v14
v_lshlrev_b32 v15, 16, v15
v_lshlrev_b32 v16, 16, v16
v_mul_f32 v16, s30, v16
v_exp_f32 v16, v16
s_nop 0
v_cvt_pk_bf16_f32 v16, v16, v16
v_lshlrev_b32 v16, 16, v16
v_mul_f32 v20, v16, v10
v_mul_f32 v20, s30, v20                 ; are2
v_mul_f32 v21, v16, v11                 ; aim
v_mul_f32 v12, v16, v12                 ; dBre
v_mul_f32 v13, v16, v13                 ; dBim
v_mul_f32 v22, v14, v12
v_fma_f32 v22, -v15, v13, v22           ; Wre
v_mul_f32 v23, v14, v13
v_fma_f32 v23, v15, v12, v23            ; Wim
ds_write_b128 v6, v[20:23]
v_and_b32 v1, 63, v0                    ; lane
v_and_b32 v2, 15, v0                    ; j / col
v_lshrrev_b32 v3, 4, v1                 ; kk / g
v_lshrrev_b32 v4, 6, v0                 ; wave
v_lshlrev_b32 v5, 3, v2
v_cvt_f32_u32 v40, v5                   ; lo = 8j
v_lshrrev_b32 v5, 3, v2
v_lshlrev_b32 v5, 7, v5
v_and_b32 v6, 7, v2
v_add_u32 v5, v5, v6
v_cvt_f32_u32 v41, v5                   ; hi0
v_lshrrev_b32 v5, 2, v2
v_lshlrev_b32 v5, 7, v5
v_and_b32 v6, 3, v2
v_lshl_add_u32 v5, v6, 1, v5
v_add_u32 v5, 256, v5                   ; j<8 variant
v_subrev_u32 v6, 8, v2
v_lshrrev_b32 v6, 1, v6
v_lshlrev_b32 v6, 7, v6
v_and_b32 v7, 1, v2
v_lshl_add_u32 v6, v7, 2, v6
v_add_u32 v6, 512, v6                   ; j>=8 variant
v_cmp_gt_u32 vcc, 8, v2
s_nop 1
v_cndmask_b32 v5, v6, v5, vcc
v_cvt_f32_u32 v42, v5                   ; hi1
v_lshlrev_b32 v5, 7, v2
v_add_u32 v5, 1024, v5
v_cvt_f32_u32 v43, v5                   ; hi2
v_lshrrev_b32 v5, 2, v4
v_lshlrev_b32 v5, 11, v5
v_and_b32 v6, 3, v4
v_lshl_add_u32 v5, v6, 9, v5
v_lshl_add_u32 v44, v3, 4, v5
""")
    for i in range(12):
        a(f"v_mov_b32 v{48+i}, 0")
    a("""
s_waitcnt lgkmcnt(0)
s_barrier
ds_read_b128 v[20:23], v44
s_mov_b32 s4, 0
L_kg_loop:
s_waitcnt lgkmcnt(0)
v_mov_b32 v24, v20
v_mov_b32 v25, v21
v_mov_b32 v26, v22
v_mov_b32 v27, v23
v_add_u32 v44, 64, v44
ds_read_b128 v[20:23], v44
""")
    P = [40, 41, 42, 43]
    for p in range(4):
        a(f"v_mul_f32 v{60+p}, v24, v{P[p]}")
        a(f"v_mul_f32 v{64+p}, v25, v{P[p]}")
    for p in range(4):
        a(f"v_exp_f32 v{60+p}, v{60+p}")
        a(f"v_mul_f32 v{68+p}, s31, v{64+p}")
    for p in range(4):
        a(f"v_fma_f32 v{72+p}, v{64+p}, s31, -v{68+p}")
        a(f"v_fract_f32 v{68+p}, v{68+p}")
    for p in range(4):
        a(f"v_fma_f32 v{72+p}, v{64+p}, s32, v{72+p}")
    for p in range(4):
        a(f"v_add_f32 v{72+p}, v{68+p}, v{72+p}")
    for p in range(4):
        a(f"v_sin_f32 v{64+p}, v{72+p}")
        a(f"v_cos_f32 v{68+p}, v{72+p}")
    a("""
s_nop 0
v_mul_f32 v76, v26, v68
v_fma_f32 v76, -v27, v64, v76
v_mul_f32 v77, v26, v64
v_fma_f32 v77, v27, v68, v77
v_mul_f32 v76, v60, v76                 ; Bre
v_mul_f32 v77, -v60, v77                ; Bim'
""")
    for p in range(1, 4):
        a(f"v_mul_f32 v{68+p}, v{60+p}, v{68+p}")
        a(f"v_mul_f32 v{64+p}, v{60+p}, v{64+p}")
    a("s_nop 1")
    for p in range(1, 4):
        acc = 48 + 4 * (p - 1)
        a(f"v_mfma_f32_16x16x4_f32 v[{acc}:{acc+3}], v{68+p}, v76, v[{acc}:{acc+3}]")
    for p in range(1, 4):
        acc = 48 + 4 * (p - 1)
        a(f"v_mfma_f32_16x16x4_f32 v[{acc}:{acc+3}], v{64+p}, v77, v[{acc}:{acc+3}]")
    a("""
s_add_u32 s4, s4, 1
s_cmp_lt_u32 s4, 8
s_cbranch_scc1 L_kg_loop
s_waitcnt lgkmcnt(0)
v_mul_u32_u24 v5, 3072, v4
v_add_u32 v5, 4096, v5
v_lshrrev_b32 v6, 1, v3
v_lshlrev_b32 v6, 7, v6
v_and_b32 v7, 1, v3
v_lshl_add_u32 v6, v7, 2, v6
v_lshl_add_u32 v6, v2, 3, v6            ; q tile0
v_lshl_add_u32 v30, v6, 2, v5
v_lshlrev_b32 v6, 6, v3
v_lshl_add_u32 v7, v2, 2, v6
v_add_u32 v7, 256, v7                   ; g<2
v_lshl_add_u32 v8, v2, 1, v6
v_add_u32 v8, 256, v8                   ; g>=2: 384+64(g-2)+2col
v_cmp_gt_u32 vcc, 2, v3
v_mov_b32 v9, 32
v_cndmask_b32 v7, v8, v7, vcc
v_cndmask_b32 v9, v9, 2, vcc
v_lshl_add_u32 v31, v7, 2, v5
v_add_u32 v7, v7, v9
v_lshl_add_u32 v32, v7, 2, v5
v_add_u32 v6, v6, v2
v_add_u32 v6, 512, v6
v_lshl_add_u32 v33, v6, 2, v5
s_nop 7
s_nop 7
ds_write_b32 v30, v48
ds_write_b32 v30, v49 offset:4
ds_write_b32 v30, v50 offset:8
ds_write_b32 v30, v51 offset:12
ds_write_b32 v31, v52
ds_write_b32 v31, v53 offset:4
ds_write_b32 v32, v54
ds_write_b32 v32, v55 offset:4
ds_write_b32 v33, v56
ds_write_b32 v33, v57 offset:64
ds_write_b32 v33, v58 offset:128
ds_write_b32 v33, v59 offset:192
s_waitcnt lgkmcnt(0)
s_barrier
v_lshrrev_b32 v1, 8, v0
v_and_b32 v2, 255, v0
v_mul_u32_u24 v5, 12288, v1
v_lshl_add_u32 v5, v2, 2, v5
v_add_u32 v5, 4096, v5
""")
    for k in range(3):
        for s in range(4):
            a(f"ds_read_b32 v{10+4*k+s}, v5 offset:{k*1024+s*3072}")
    a("""
v_mul_u32_u24 v6, 3072, v1
v_lshl_add_u32 v6, v2, 2, v6
v_add_u32 v6, 28672, v6
s_waitcnt lgkmcnt(0)
""")
    for k in range(3):
        a(f"v_add_f32 v{10+4*k}, v{10+4*k}, v{11+4*k}")
        a(f"v_add_f32 v{12+4*k}, v{12+4*k}, v{13+4*k}")
        a(f"v_add_f32 v{10+4*k}, v{10+4*k}, v{12+4*k}")
    a("""
ds_write_b32 v6, v10
ds_write_b32 v6, v14 offset:1024
ds_write_b32 v6, v18 offset:2048
v_cmp_ge_u32 vcc, 128, v2               ; q=512+t' valid if t'<=128
v_max_f32 v7, abs(v10), abs(v14)
v_and_b32 v8, 0x7fffffff, v18
v_cndmask_b32 v8, 0, v8, vcc
v_max_f32 v7, v7, v8
s_nop 1
v_max_f32 v7, v7, v7 quad_perm:[1,0,3,2]
s_nop 1
v_max_f32 v7, v7, v7 quad_perm:[2,3,0,1]
s_nop 1
v_max_f32 v7, v7, v7 row_half_mirror
s_nop 1
v_max_f32 v7, v7, v7 row_mirror
v_lshrrev_b32 v8, 4, v0                 ; 16-lane row index (0..31)
v_lshlrev_b32 v8, 2, v8
ds_write_b32 v8, v7 offset:34816
s_waitcnt lgkmcnt(0)
s_barrier
v_lshlrev_b32 v8, 6, v1
ds_read_b128 v[10:13], v8 offset:34816
ds_read_b128 v[14:17], v8 offset:34832
ds_read_b128 v[18:21], v8 offset:34848
ds_read_b128 v[22:25], v8 offset:34864
s_waitcnt lgkmcnt(0)
v_max3_f32 v10, v10, v11, v12
v_max3_f32 v13, v13, v14, v15
v_max3_f32 v16, v16, v17, v18
v_max3_f32 v19, v19, v20, v21
v_max3_f32 v22, v22, v23, v24
v_max3_f32 v10, v10, v13, v16
v_max3_f32 v19, v19, v22, v25
v_max_f32 v10, v10, v19
v_lshrrev_b32 v10, 23, v10              ; biased exponent of max
v_max_u32 v10, 40, v10
v_min_u32 v10, 250, v10
v_sub_u32 v11, 268, v10
v_lshlrev_b32 v11, 23, v11              ; scale = 2^(14-e)
v_subrev_u32 v12, 24, v10
v_lshlrev_b32 v12, 23, v12              ; inv scale total = 2^(e-14-10)
; table entries idx = 4*t' + i
v_mul_u32_u24 v6, 3072, v1
v_add_u32 v6, 28672, v6                 ; Ksum base of channel
v_lshlrev_b32 v13, 2, v2                ; idx0
v_cmp_gt_u32 vcc, 816, v13
v_mov_b32 v14, 943
v_mov_b32 v15, 513
v_cndmask_b32 v14, v14, 759, vcc
""".replace("v_cndmask_b32 v14, v14, 759, vcc", "v_mov_b32 v16, 775\nv_mov_b32 v17, 385\nv_cndmask_b32 v14, v14, v16, vcc\nv_cndmask_b32 v15, v15, v17, vcc"))
    a("""
v_cmp_gt_u32 s[6:7], 600, v13           ; near region
""".replace("v_cmp_gt_u32 s[6:7], 600, v13", "s_movk_i32 s5, 616\nv_cmp_gt_u32 s[6:7], s5, v13"))
    a("s_movk_i32 s33, 384\ns_movk_i32 s34, 514\ns_movk_i32 s35, 256\ns_movk_i32 s36, 127")
    for i in range(4):
        a(f"""
v_add_u32 v20, {i}, v13
v_sub_u32 v21, 575, v20                 ; l
v_bfe_u32 v22, v21, 1, 1
v_add_u32 v22, v22, v21
v_lshrrev_b32 v22, 1, v22
v_add_u32 v22, 128, v22
v_min_u32 v22, s33, v22
v_cmp_ge_u32 vcc, s35, v21
v_sub_u32 v23, v14, v20                 ; i (far)
v_cndmask_b32 v22, v22, v21, vcc        ; q near
v_cmp_ge_u32 s[8:9], s34, v21
v_cmp_ge_u32 s[10:11], s36, v23
v_add_u32 v23, v23, v15                 ; q far
v_cndmask_b32 v22, v23, v22, s[6:7]
s_and_b64 s[8:9], s[8:9], s[6:7]
s_andn2_b64 s[10:11], s[10:11], s[6:7]
s_or_b64 s[{40+2*i}:{41+2*i}], s[8:9], s[10:11]
v_min_u32 v22, 767, v22
v_lshl_add_u32 v22, v22, 2, v6
ds_read_b32 v{24+i}, v22
""")
    a("""
ds_read_b32 v30, v6 offset:2048
s_waitcnt lgkmcnt(0)
""")
    for i in range(4):
        a(f"v_mul_f32 v{24+i}, v{24+i}, v11")
        a(f"v_cndmask_b32 v{24+i}, 0, v{24+i}, s[{40+2*i}:{41+2*i}]")
    a(f"""
v_cvt_pk_f16_f32 v32, v24, v25
v_cvt_pk_f16_f32 v33, v26, v27
v_cvt_f32_f16 v34, v32
v_cvt_f32_f16 v35, v32 src0_sel:WORD_1
v_cvt_f32_f16 v36, v33
v_cvt_f32_f16 v37, v33 src0_sel:WORD_1
v_sub_f32 v34, v24, v34
v_sub_f32 v35, v25, v35
v_sub_f32 v36, v26, v36
v_sub_f32 v37, v27, v37
v_cvt_pk_f16_f32 v34, v34, v35
v_cvt_pk_f16_f32 v35, v36, v37
v_mul_f32 v13, v30, v11
v_cmp_eq_u32 vcc, 254, v2
v_add_u32 v3, s3, v1
v_lshlrev_b32 v3, 12, v3
v_cndmask_b32 v32, v32, v12, vcc
v_cndmask_b32 v33, v33, v13, vcc
v_lshl_add_u32 v3, v2, 3, v3
s_mov_b32 s5, {KT}
buffer_store_dwordx2 v[32:33], v3, s[24:27], s5 offen
buffer_store_dwordx2 v[34:35], v3, s[24:27], s5 offen offset:2048
s_endpgm
""")
    a(f"""
L_prep_notk:
s_cmp_ge_u32 s2, {N_KGEN+N_XP}
s_cbranch_scc1 L_prep_w
s_load_dwordx2 s[8:9], s[0:1], 0
s_sub_u32 s3, s2, {N_KGEN}               ; block
v_and_b32 v1, 63, v0
v_lshrrev_b32 v4, 6, v0                 ; wave
s_lshl_b32 s4, s3, 16                   ; t0*1024
v_lshlrev_b32 v5, 13, v4
v_lshl_add_u32 v5, v1, 4, v5
v_add_u32 v5, s4, v5
v_add_u32 v6, 4096, v5
s_waitcnt lgkmcnt(0)
""")
    for i in range(8):
        src = "v5" if i < 4 else "v6"
        a(f"global_load_dwordx4 v[{16+4*i}:{19+4*i}], {src}, s[8:9] offset:{(i%4)*1024}")
    srd(a, 24, 22, 23, WS_BYTES)
    a(f"""
v_mul_u32_u24 v7, {8*1056}, v4
v_lshl_add_u32 v7, v1, 4, v7
s_mov_b32 s5, 0x3f803f80
""")
    for i in range(8):
        a(f"s_waitcnt vmcnt({7-i})")
        a(f"ds_write_b128 v7, v[{16+4*i}:{19+4*i}] offset:{i*1056}")
        a(f"v_dot2_f32_bf16 v{48+i}, v{16+4*i}, s5, 0")
        a(f"v_dot2_f32_bf16 v{56+i}, v{16+4*i}, v{16+4*i}, 0")
        for k in range(1, 4):
            a(f"v_dot2_f32_bf16 v{48+i}, v{16+4*i+k}, s5, v{48+i}")
            a(f"v_dot2_f32_bf16 v{56+i}, v{16+4*i+k}, v{16+4*i+k}, v{56+i}")
    a("s_nop 3")
    for i in range(8):
        a(f"v_permlane32_swap_b32 v{48+i}, v{56+i}")
    a("s_nop 1")
    for i in range(8):
        a(f"v_add_f32 v{48+i}, v{48+i}, v{56+i}")
    a("s_nop 1")
    for i in range(4):
        a(f"v_permlane16_swap_b32 v{48+i}, v{52+i}")
    a("s_nop 1")
    for i in range(4):
        a(f"v_add_f32 v{48+i}, v{48+i}, v{52+i}")
    for mod in ["quad_perm:[1,0,3,2]", "quad_perm:[2,3,0,1]", "row_half_mirror", "row_mirror"]:
        a("s_nop 1")
        for i in range(4):
            a(f"v_add_f32 v{48+i}, v{48+i}, v{48+i} {mod}")
    a(f"""
v_and_b32 v8, 3, v1
v_cmp_eq_u32 vcc, 1, v8
v_cmp_eq_u32 s[6:7], 2, v8
v_cmp_eq_u32 s[10:11], 3, v8
s_nop 1
v_cndmask_b32 v48, v48, v49, vcc
v_cndmask_b32 v48, v48, v50, s[6:7]
v_cndmask_b32 v48, v48, v51, s[10:11]
v_bfe_u32 v9, v1, 4, 1
v_lshl_add_u32 v8, v9, 2, v8
v_lshl_add_u32 v8, v4, 3, v8
s_lshl_b32 s4, s3, 6
v_add_u32 v8, s4, v8
v_lshlrev_b32 v8, 2, v8
v_lshrrev_b32 v9, 5, v1
v_lshl_add_u32 v8, v9, 13, v8
v_and_b32 v9, 15, v1
v_cmp_gt_u32 vcc, 4, v9
v_mov_b32 v49, 0
s_mov_b32 s5, {ST0}
s_mov_b32 s6, {ST2}
s_and_saveexec_b64 s[10:11], vcc
buffer_store_dword v48, v8, s[24:27], s5 offen
buffer_store_dword v49, v8, s[24:27], s6 offen
s_mov_b64 exec, s[10:11]
s_waitcnt lgkmcnt(0)
s_barrier
v_lshrrev_b32 v8, 4, v1
v_bfe_u32 v9, v1, 2, 2
v_lshl_add_u32 v9, v8, 3, v9            ; row = 8g + r
v_mul_u32_u24 v9, 1056, v9
v_and_b32 v10, 3, v1
v_lshl_add_u32 v9, v10, 3, v9
v_lshl_add_u32 v9, v4, 7, v9
v_and_b32 v10, 15, v1
v_lshl_add_u32 v10, v4, 6, v10
v_lshlrev_b32 v10, 12, v10
v_lshl_add_u32 v10, v8, 4, v10
s_lshl_b32 s4, s3, 7
v_add_u32 v10, s4, v10
""")
    n = 0
    for db in range(4):
        for hh in range(2):
            r = 16 + 4 * n
            off = db * 32 + hh * 32 * 1056
            a(f"ds_read_b64_tr_b16 v[{r}:{r+1}], v9 offset:{off}")
            a(f"ds_read_b64_tr_b16 v[{r+2}:{r+3}], v9 offset:{off+4*1056}")
            n += 1
    n = 0
    for db in range(4):
        a(f"s_mov_b32 s5, {XT0 + db*16*4096}")
        for hh in range(2):
            r = 16 + 4 * n
            a(f"s_waitcnt lgkmcnt({14-2*n})")
            a(f"buffer_store_dwordx4 v[{r}:{r+3}], v10, s[24:27], s5 offen offset:{hh*64}")
            n += 1
    a("s_endpgm")
    a(f"""
L_prep_w:
s_cmp_ge_u32 s2, {N_KGEN+N_XP+N_WGU}
s_cbranch_scc1 L_prep_wd
s_load_dwordx4 s[8:11], s[0:1], 80
s_sub_u32 s3, s2, {N_KGEN+N_XP}
s_lshr_b32 s4, s3, 4                    ; ct
s_and_b32 s5, s3, 15                    ; ks
v_lshrrev_b32 v1, 4, v0
v_and_b32 v2, 15, v0
s_lshl_b32 s6, s5, 5
v_add_u32 v3, s6, v1
s_movk_i32 s7, 2752
v_mul_lo_u32 v3, v3, s7
s_mul_i32 s6, s4, 192
v_lshl_add_u32 v3, v2, 4, v3
v_add_u32 v3, s6, v3
s_waitcnt lgkmcnt(0)
""")
    srd(a, 12, 8, 9, 512*1376*2)
    srd(a, 16, 10, 11, 512*1376*2)
    srd(a, 24, 22, 23, WS_BYTES)
    a(f"""
buffer_load_dwordx4 v[8:11], v3, s[12:15], 0 offen
buffer_load_dwordx4 v[12:15], v3, s[16:19], 0 offen
v_mul_u32_u24 v4, 272, v1
v_lshl_add_u32 v4, v2, 4, v4
v_and_b32 v5, 1, v0
v_mul_u32_u24 v5, 8704, v5
v_bfe_u32 v6, v0, 1, 3
v_lshl_add_u32 v5, v6, 1, v5
v_bfe_u32 v6, v0, 4, 2
v_mul_u32_u24 v6, {4*272}, v6
v_add_u32 v5, v5, v6
v_lshrrev_b32 v7, 6, v0
v_lshl_add_u32 v5, v7, 4, v5
s_waitcnt vmcnt(1)
ds_write_b128 v4, v[8:11]
s_waitcnt vmcnt(0)
ds_write_b128 v4, v[12:15] offset:8704
s_waitcnt lgkmcnt(0)
s_barrier
""")
    for rnd in range(2):
        for e in range(8):
            k = e if e < 4 else 16 + e - 4
            a(f"ds_read_u16 v{32+8*rnd+e}, v5 offset:{k*272 + rnd*128}")
    a(f"""
v_readfirstlane_b32 s6, v7
v_and_b32 v1, 63, v0
v_lshlrev_b32 v1, 4, v1
s_mul_i32 s7, s6, 11
s_lshr_b32 s7, s7, 5                    ; tt/3
s_mul_i32 s12, s7, 3
s_sub_u32 s12, s6, s12                  ; T
s_lshl_b32 s13, s4, 2
s_add_u32 s13, s13, s7
s_lshl_b32 s13, s13, 4
s_add_u32 s13, s13, s5
s_mul_i32 s13, s13, 3
s_add_u32 s13, s13, s12
s_lshl_b32 s13, s13, 10
s_add_u32 s13, s13, {WGU}
s_waitcnt lgkmcnt(8)
v_lshl_or_b32 v16, v33, 16, v32
v_lshl_or_b32 v17, v35, 16, v34
v_lshl_or_b32 v18, v37, 16, v36
v_lshl_or_b32 v19, v39, 16, v38
buffer_store_dwordx4 v[16:19], v1, s[24:27], s13 offen
s_cmp_ge_u32 s6, 4
s_cbranch_scc1 L_prep_end
s_add_u32 s6, s6, 8
s_mul_i32 s7, s6, 11
s_lshr_b32 s7, s7, 5
s_mul_i32 s12, s7, 3
s_sub_u32 s12, s6, s12
s_lshl_b32 s13, s4, 2
s_add_u32 s13, s13, s7
s_lshl_b32 s13, s13, 4
s_add_u32 s13, s13, s5
s_mul_i32 s13, s13, 3
s_add_u32 s13, s13, s12
s_lshl_b32 s13, s13, 10
s_add_u32 s13, s13, {WGU}
s_waitcnt lgkmcnt(0)
v_lshl_or_b32 v20, v41, 16, v40
v_lshl_or_b32 v21, v43, 16, v42
v_lshl_or_b32 v22, v45, 16, v44
v_lshl_or_b32 v23, v47, 16, v46
buffer_store_dwordx4 v[20:23], v1, s[24:27], s13 offen
s_endpgm
""")
    a(f"""
L_prep_wd:
s_load_dwordx2 s[8:9], s[0:1], 96
s_sub_u32 s3, s2, {N_KGEN+N_XP+N_WGU}
s_lshr_b32 s4, s3, 1                    ; ks
s_and_b32 s5, s3, 1                     ; dhalf
v_lshrrev_b32 v1, 5, v0                 ; row 0..15 (+16)
v_and_b32 v2, 31, v0
s_lshl_b32 s6, s4, 15                   ; ks*32*1024
s_lshl_b32 s7, s5, 9
s_add_u32 s6, s6, s7
v_lshlrev_b32 v3, 10, v1
v_lshl_add_u32 v3, v2, 4, v3
v_add_u32 v3, s6, v3
v_add_u32 v4, 16384, v3
s_waitcnt lgkmcnt(0)
global_load_dwordx4 v[8:11], v3, s[8:9]
global_load_dwordx4 v[12:15], v4, s[8:9]
""")
    srd(a, 24, 22, 23, WS_BYTES)
    a(f"""
v_mul_u32_u24 v4, 528, v1
v_lshl_add_u32 v4, v2, 4, v4
v_and_b32 v5, 15, v0
v_lshlrev_b32 v5, 1, v5
v_bfe_u32 v6, v0, 4, 2
v_mul_u32_u24 v6, {2*528}, v6
v_add_u32 v5, v5, v6
v_lshrrev_b32 v7, 6, v0
v_lshl_add_u32 v5, v7, 6, v5
s_waitcnt vmcnt(1)
ds_write_b128 v4, v[8:11]
s_waitcnt vmcnt(0)
ds_write_b128 v4, v[12:15] offset:{16*528}
s_waitcnt lgkmcnt(0)
s_barrier
""")
    for rnd in range(2):
        for e in range(8):
            f = 8 * (e >> 1) + (e & 1)
            a(f"ds_read_u16 v{32+8*rnd+e}, v5 offset:{f*528 + rnd*32}")
    a(f"""
v_readfirstlane_b32 s6, v7
v_and_b32 v1, 63, v0
v_lshlrev_b32 v1, 4, v1
s_lshr_b32 s7, s6, 1                    ; nt>>2
s_lshl_b32 s12, s5, 2
s_add_u32 s7, s7, s12                   ; dblk
s_mul_i32 s7, s7, 43
s_add_u32 s7, s7, s4
s_lshl_b32 s7, s7, 2
s_and_b32 s12, s6, 1
s_lshl_b32 s12, s12, 1
s_add_u32 s7, s7, s12
s_lshl_b32 s7, s7, 10
s_add_u32 s7, s7, {WD}
s_waitcnt lgkmcnt(8)
v_lshl_or_b32 v16, v33, 16, v32
v_lshl_or_b32 v17, v35, 16, v34
v_lshl_or_b32 v18, v37, 16, v36
v_lshl_or_b32 v19, v39, 16, v38
buffer_store_dwordx4 v[16:19], v1, s[24:27], s7 offen
s_waitcnt lgkmcnt(0)
v_lshl_or_b32 v20, v41, 16, v40
v_lshl_or_b32 v21, v43, 16, v42
v_lshl_or_b32 v22, v45, 16, v44
v_lshl_or_b32 v23, v47, 16, v46
buffer_store_dwordx4 v[20:23], v1, s[24:27], s7 offen offset:1024
L_prep_end:
s_endpgm
""")

HEADER = open("interleave_layers__ssm_conv_s4__swiglu_ffn__prompt.s.ref").read().split("; Override launch")[0]

def main():
    a = A()
    launches = [("prep_kernel", PREP_WGS, 512, PREP_LDS)]
    kds = [kd("prep_kernel", 80)]
    gen_prep(a)
    import importlib
    for modname in ["gen_conv", "gen_ffn"]:
        try:
            m = importlib.import_module(modname)
        except ImportError:
            continue
        m.emit(a, launches, kds)
    if len(sys.argv) > 2:
        order = sys.argv[2].split(",")
    out = HEADER
    order = ["prep_kernel", "conv1_kernel", "gateup1_kernel", "down1_kernel", "conv2_kernel", "gateup2_kernel", "down2_kernel"]
    ld = {l[0]: l for l in launches}
    for n in order:
        if n in ld:
            _, g, b, lds = ld[n]
            out += f"; @launch kernel={n} grid=({g},1,1) block=({b},1,1) lds={lds}\n"
    out += '.amdgcn_target "amdgcn-amd-amdhsa--gfx950"\n.text\n'
    out += a.text()
    out += '.section .rodata,"a"\n' + "".join(kds)
    path = sys.argv[1] if len(sys.argv) > 1 else "interleave_layers__ssm_conv_s4__swiglu_ffn__prompt.s"
    open(path, "w").write(out)
    print("wrote", path, len(out))

if __name__ == "__main__":
    sys.path.insert(0, "dev")
    sys.modules["gen"] = sys.modules["__main__"]
    main()
```

```python
import struct, sys, math

def f32bits(x):
    return struct.unpack("<I", struct.pack("<f", x))[0]

XT0 = 0x000000
XT1 = 0x200000
XT2 = 0x400000
XT3 = 0x600000
ST0 = 0x800000
ST2 = 0x810000
KT  = 0x900000
WGU = 0xC00000
WD  = 0x1000000
HF  = 0x1200000
WS_BYTES = 268435456

LOG2E = 1.4426950408889634
INV2PI = 1.0 / (2 * math.pi)
C1 = struct.unpack("<f", struct.pack("<f", INV2PI))[0]
C2 = INV2PI - C1

class A:
    def __init__(self):
        self.l = []
    def __call__(self, s):
        for line in s.strip("\n").split("\n"):
            self.l.append("    " + line.strip() if not line.strip().endswith(":") else line.strip())
    def label(self, s):
        self.l.append(s + ":")
    def text(self):
        import hazard
        return "\n".join(hazard.fix(self.l)) + "\n"

def srd(a, d, lo, hi, nbytes):
    a(f"""s_mov_b32 s{d}, s{lo}
s_mov_b32 s{d+1}, s{hi}
s_mov_b32 s{d+2}, {nbytes}
s_mov_b32 s{d+3}, 0x00020000""")

import os
STAMP = int(os.environ.get("STAMP", "0"))
def stamp(a, i):
    if STAMP:
        a(f"s_memtime s[{60+2*i}:{61+2*i}]")
def stamp_dump(a, n, slot_sreg, wgsel=0):
    if not STAMP: return
    a(f"""s_waitcnt lgkmcnt(0)
s_mov_b64 exec, -1
s_cmp_lg_u32 s2, {wgsel}
s_cbranch_scc1 L_sd_{len(a.l)}
s_load_dwordx2 s[56:57], s[0:1], 112
s_lshl_b32 s58, s{slot_sreg}, 5
v_mov_b32 v1, s58
s_waitcnt lgkmcnt(0)""")
    lab = [x for x in a.l if x.strip().startswith("s_cbranch_scc1 L_sd_")][-1].split()[-1]
    for i in range(n):
        a(f"v_mov_b32 v2, s{60+2*i}\nglobal_store_dword v1, v2, s[56:57] offset:{4*i}")
    a(f"s_waitcnt vmcnt(0)\n{lab}:")

def kernel_head(a, name):
    a.l.append(f".globl {name}")
    a.l.append(".p2align 8")
    a.l.append(f".type {name},@function")
    a.l.append(f"{name}:")

def kd(name, vgpr, sgpr=96, accum=None):
    accum = accum if accum is not None else (vgpr + 3) // 4 * 4
    return f""".p2align 6
.amdhsa_kernel {name}
  .amdhsa_next_free_vgpr {vgpr}
  .amdhsa_next_free_sgpr {sgpr}
  .amdhsa_accum_offset {accum}
  .amdhsa_group_segment_fixed_size 0
  .amdhsa_kernarg_size 128
  .amdhsa_user_sgpr_count 2
  .amdhsa_user_sgpr_kernarg_segment_ptr 1
  .amdhsa_system_sgpr_workgroup_id_x 1
.end_amdhsa_kernel
"""

N_KGEN = 256
N_XP = 32
N_WGU = 240
N_WD = 86
PREP_WGS = N_KGEN + N_XP + N_WGU + N_WD
PREP_LDS = 69632

def gen_prep(a):
    nb = int(os.environ.get("DEGRADE", "0"))
    m16 = (0xffff << nb) & 0xffff
    DEGRADE = f"v_and_b32 v32, {m16 | (m16 << 16):#x}, v32\nv_and_b32 v33, {m16 | (m16 << 16):#x}, v33" if nb else ""
    kernel_head(a, "prep_kernel")
    a(f"""
s_load_dwordx2 s[22:23], s[0:1], 120
s_cmp_ge_u32 s2, {PREP_WGS}
s_cbranch_scc1 L_prep_end
s_cmp_ge_u32 s2, {N_KGEN}
s_cbranch_scc1 L_prep_notk
""")
    a(f"""
s_load_dwordx8 s[8:15], s[0:1], 8
s_load_dwordx4 s[16:19], s[0:1], 40
s_load_dwordx2 s[20:21], s[0:1], 56
v_lshrrev_b32 v1, 8, v0                 ; ch
v_and_b32 v2, 127, v0                   ; n
s_lshl_b32 s3, s2, 1
v_add_u32 v3, s3, v1                    ; d
v_lshlrev_b32 v4, 7, v3
v_add_u32 v4, v4, v2
v_lshlrev_b32 v4, 1, v4                 ; (d*128+n)*2
v_lshlrev_b32 v5, 1, v3                 ; d*2
s_waitcnt lgkmcnt(0)
global_load_ushort v10, v4, s[8:9]
global_load_ushort v11, v4, s[10:11]
global_load_ushort v12, v4, s[12:13]
global_load_ushort v13, v4, s[14:15]
global_load_ushort v14, v4, s[16:17]
global_load_ushort v15, v4, s[18:19]
global_load_ushort v16, v5, s[20:21]
""")
    srd(a, 24, 22, 23, WS_BYTES)
    a(f"""
s_mov_b32 s30, {f32bits(LOG2E):#x}
s_mov_b32 s31, {f32bits(C1):#x}
s_mov_b32 s32, {f32bits(C2):#x}
v_lshlrev_b32 v6, 11, v1
v_lshl_add_u32 v6, v2, 4, v6
s_waitcnt vmcnt(0)
v_lshlrev_b32 v10, 16, v10
v_lshlrev_b32 v11, 16, v11
v_lshlrev_b32 v12, 16, v12
v_lshlrev_b32 v13, 16, v13
v_lshlrev_b32 v14, 16, v14
v_lshlrev_b32 v15, 16, v15
v_lshlrev_b32 v16, 16, v16
v_mul_f32 v16, s30, v16
v_exp_f32 v16, v16
s_nop 0
v_cvt_pk_bf16_f32 v16, v16, v16
v_lshlrev_b32 v16, 16, v16
v_mul_f32 v20, v16, v10
v_mul_f32 v20, s30, v20                 ; are2
v_mul_f32 v21, v16, v11                 ; aim
v_mul_f32 v12, v16, v12                 ; dBre
v_mul_f32 v13, v16, v13                 ; dBim
v_mul_f32 v22, v14, v12
v_fma_f32 v22, -v15, v13, v22           ; Wre
v_mul_f32 v23, v14, v13
v_fma_f32 v23, v15, v12, v23            ; Wim
ds_write_b128 v6, v[20:23]
v_and_b32 v1, 63, v0                    ; lane
v_and_b32 v2, 15, v0                    ; j / col
v_lshrrev_b32 v3, 4, v1                 ; kk / g
v_lshrrev_b32 v4, 6, v0                 ; wave
v_lshlrev_b32 v5, 3, v2
v_cvt_f32_u32 v40, v5                   ; lo = 8j
v_lshrrev_b32 v5, 3, v2
v_lshlrev_b32 v5, 7, v5
v_and_b32 v6, 7, v2
v_add_u32 v5, v5, v6
v_cvt_f32_u32 v41, v5                   ; hi0
v_lshrrev_b32 v5, 2, v2
v_lshlrev_b32 v5, 7, v5
v_and_b32 v6, 3, v2
v_lshl_add_u32 v5, v6, 1, v5
v_add_u32 v5, 256, v5                   ; j<8 variant
v_subrev_u32 v6, 8, v2
v_lshrrev_b32 v6, 1, v6
v_lshlrev_b32 v6, 7, v6
v_and_b32 v7, 1, v2
v_lshl_add_u32 v6, v7, 2, v6
v_add_u32 v6, 512, v6                   ; j>=8 variant
v_cmp_gt_u32 vcc, 8, v2
s_nop 1
v_cndmask_b32 v5, v6, v5, vcc
v_cvt_f32_u32 v42, v5                   ; hi1
v_lshlrev_b32 v5, 7, v2
v_add_u32 v5, 1024, v5
v_cvt_f32_u32 v43, v5                   ; hi2
v_lshrrev_b32 v5, 2, v4
v_lshlrev_b32 v5, 11, v5
v_and_b32 v6, 3, v4
v_lshl_add_u32 v5, v6, 9, v5
v_lshl_add_u32 v44, v3, 4, v5
""")
    for i in range(12):
        a(f"v_mov_b32 v{48+i}, 0")
    a("""
s_waitcnt lgkmcnt(0)
s_barrier
ds_read_b128 v[20:23], v44
s_mov_b32 s4, 0
L_kg_loop:
s_waitcnt lgkmcnt(0)
v_mov_b32 v24, v20
v_mov_b32 v25, v21
v_mov_b32 v26, v22
v_mov_b32 v27, v23
v_add_u32 v44, 64, v44
ds_read_b128 v[20:23], v44
""")
    P = [40, 41, 42, 43]
    for p in range(4):
        a(f"v_mul_f32 v{60+p}, v24, v{P[p]}")
        a(f"v_mul_f32 v{64+p}, v25, v{P[p]}")
    for p in range(4):
        a(f"v_exp_f32 v{60+p}, v{60+p}")
        a(f"v_mul_f32 v{68+p}, s31, v{64+p}")
    for p in range(4):
        a(f"v_fma_f32 v{72+p}, v{64+p}, s31, -v{68+p}")
        a(f"v_fract_f32 v{68+p}, v{68+p}")
    for p in range(4):
        a(f"v_fma_f32 v{72+p}, v{64+p}, s32, v{72+p}")
    for p in range(4):
        a(f"v_add_f32 v{72+p}, v{68+p}, v{72+p}")
    for p in range(4):
        a(f"v_sin_f32 v{64+p}, v{72+p}")
        a(f"v_cos_f32 v{68+p}, v{72+p}")
    a("""
s_nop 0
v_mul_f32 v76, v26, v68
v_fma_f32 v76, -v27, v64, v76
v_mul_f32 v77, v26, v64
v_fma_f32 v77, v27, v68, v77
v_mul_f32 v76, v60, v76                 ; Bre
v_mul_f32 v77, -v60, v77                ; Bim'
""")
    for p in range(1, 4):
        a(f"v_mul_f32 v{68+p}, v{60+p}, v{68+p}")
        a(f"v_mul_f32 v{64+p}, v{60+p}, v{64+p}")
    a("s_nop 1")
    for p in range(1, 4):
        acc = 48 + 4 * (p - 1)
        a(f"v_mfma_f32_16x16x4_f32 v[{acc}:{acc+3}], v{68+p}, v76, v[{acc}:{acc+3}]")
    for p in range(1, 4):
        acc = 48 + 4 * (p - 1)
        a(f"v_mfma_f32_16x16x4_f32 v[{acc}:{acc+3}], v{64+p}, v77, v[{acc}:{acc+3}]")
    a("""
s_add_u32 s4, s4, 1
s_cmp_lt_u32 s4, 8
s_cbranch_scc1 L_kg_loop
s_waitcnt lgkmcnt(0)
v_mul_u32_u24 v5, 3072, v4
v_add_u32 v5, 4096, v5
v_lshrrev_b32 v6, 1, v3
v_lshlrev_b32 v6, 7, v6
v_and_b32 v7, 1, v3
v_lshl_add_u32 v6, v7, 2, v6
v_lshl_add_u32 v6, v2, 3, v6            ; q tile0
v_lshl_add_u32 v30, v6, 2, v5
v_lshlrev_b32 v6, 6, v3
v_lshl_add_u32 v7, v2, 2, v6
v_add_u32 v7, 256, v7                   ; g<2
v_lshl_add_u32 v8, v2, 1, v6
v_add_u32 v8, 256, v8                   ; g>=2: 384+64(g-2)+2col
v_cmp_gt_u32 vcc, 2, v3
v_mov_b32 v9, 32
v_cndmask_b32 v7, v8, v7, vcc
v_cndmask_b32 v9, v9, 2, vcc
v_lshl_add_u32 v31, v7, 2, v5
v_add_u32 v7, v7, v9
v_lshl_add_u32 v32, v7, 2, v5
v_add_u32 v6, v6, v2
v_add_u32 v6, 512, v6
v_lshl_add_u32 v33, v6, 2, v5
s_nop 7
s_nop 7
ds_write_b32 v30, v48
ds_write_b32 v30, v49 offset:4
ds_write_b32 v30, v50 offset:8
ds_write_b32 v30, v51 offset:12
ds_write_b32 v31, v52
ds_write_b32 v31, v53 offset:4
ds_write_b32 v32, v54
ds_write_b32 v32, v55 offset:4
ds_write_b32 v33, v56
ds_write_b32 v33, v57 offset:64
ds_write_b32 v33, v58 offset:128
ds_write_b32 v33, v59 offset:192
s_waitcnt lgkmcnt(0)
s_barrier
v_lshrrev_b32 v1, 8, v0
v_and_b32 v2, 255, v0
v_mul_u32_u24 v5, 12288, v1
v_lshl_add_u32 v5, v2, 2, v5
v_add_u32 v5, 4096, v5
""")
    for k in range(3):
        for s in range(4):
            a(f"ds_read_b32 v{10+4*k+s}, v5 offset:{k*1024+s*3072}")
    a("""
v_mul_u32_u24 v6, 3072, v1
v_lshl_add_u32 v6, v2, 2, v6
v_add_u32 v6, 28672, v6
s_waitcnt lgkmcnt(0)
""")
    for k in range(3):
        a(f"v_add_f32 v{10+4*k}, v{10+4*k}, v{11+4*k}")
        a(f"v_add_f32 v{12+4*k}, v{12+4*k}, v{13+4*k}")
        a(f"v_add_f32 v{10+4*k}, v{10+4*k}, v{12+4*k}")
    a("""
ds_write_b32 v6, v10
ds_write_b32 v6, v14 offset:1024
ds_write_b32 v6, v18 offset:2048
v_cmp_ge_u32 vcc, 128, v2               ; q=512+t' valid if t'<=128
v_max_f32 v7, abs(v10), abs(v14)
v_and_b32 v8, 0x7fffffff, v18
v_cndmask_b32 v8, 0, v8, vcc
v_max_f32 v7, v7, v8
s_nop 1
v_max_f32 v7, v7, v7 quad_perm:[1,0,3,2]
s_nop 1
v_max_f32 v7, v7, v7 quad_perm:[2,3,0,1]
s_nop 1
v_max_f32 v7, v7, v7 row_half_mirror
s_nop 1
v_max_f32 v7, v7, v7 row_mirror
v_lshrrev_b32 v8, 4, v0                 ; 16-lane row index (0..31)
v_lshlrev_b32 v8, 2, v8
ds_write_b32 v8, v7 offset:34816
s_waitcnt lgkmcnt(0)
s_barrier
v_lshlrev_b32 v8, 6, v1
ds_read_b128 v[10:13], v8 offset:34816
ds_read_b128 v[14:17], v8 offset:34832
ds_read_b128 v[18:21], v8 offset:34848
ds_read_b128 v[22:25], v8 offset:34864
s_waitcnt lgkmcnt(0)
v_max3_f32 v10, v10, v11, v12
v_max3_f32 v13, v13, v14, v15
v_max3_f32 v16, v16, v17, v18
v_max3_f32 v19, v19, v20, v21
v_max3_f32 v22, v22, v23, v24
v_max3_f32 v10, v10, v13, v16
v_max3_f32 v19, v19, v22, v25
v_max_f32 v10, v10, v19
v_lshrrev_b32 v10, 23, v10              ; biased exponent of max
v_max_u32 v10, 40, v10
v_min_u32 v10, 250, v10
v_sub_u32 v11, 268, v10
v_lshlrev_b32 v11, 23, v11              ; scale = 2^(14-e)
v_subrev_u32 v12, 24, v10
v_lshlrev_b32 v12, 23, v12              ; inv scale total = 2^(e-14-10)
; table entries idx = 4*t' + i
v_mul_u32_u24 v6, 3072, v1
v_add_u32 v6, 28672, v6                 ; Ksum base of channel
v_lshlrev_b32 v13, 2, v2                ; idx0
v_cmp_gt_u32 vcc, 816, v13
v_mov_b32 v14, 943
v_mov_b32 v15, 513
v_cndmask_b32 v14, v14, 759, vcc
""".replace("v_cndmask_b32 v14, v14, 759, vcc", "v_mov_b32 v16, 775\nv_mov_b32 v17, 385\nv_cndmask_b32 v14, v14, v16, vcc\nv_cndmask_b32 v15, v15, v17, vcc"))
    a("""
v_cmp_gt_u32 s[6:7], 600, v13           ; near region
""".replace("v_cmp_gt_u32 s[6:7], 600, v13", "s_movk_i32 s5, 616\nv_cmp_gt_u32 s[6:7], s5, v13"))
    a("s_movk_i32 s33, 384\ns_movk_i32 s34, 514\ns_movk_i32 s35, 256\ns_movk_i32 s36, 127")
    for i in range(4):
        a(f"""
v_add_u32 v20, {i}, v13
v_sub_u32 v21, 575, v20                 ; l
v_bfe_u32 v22, v21, 1, 1
v_add_u32 v22, v22, v21
v_lshrrev_b32 v22, 1, v22
v_add_u32 v22, 128, v22
v_min_u32 v22, s33, v22
v_cmp_ge_u32 vcc, s35, v21
v_sub_u32 v23, v14, v20                 ; i (far)
v_cndmask_b32 v22, v22, v21, vcc        ; q near
v_cmp_ge_u32 s[8:9], s34, v21
v_cmp_ge_u32 s[10:11], s36, v23
v_add_u32 v23, v23, v15                 ; q far
v_cndmask_b32 v22, v23, v22, s[6:7]
s_and_b64 s[8:9], s[8:9], s[6:7]
s_andn2_b64 s[10:11], s[10:11], s[6:7]
s_or_b64 s[{40+2*i}:{41+2*i}], s[8:9], s[10:11]
v_min_u32 v22, 767, v22
v_lshl_add_u32 v22, v22, 2, v6
ds_read_b32 v{24+i}, v22
""")
    a("""
ds_read_b32 v30, v6 offset:2048
s_waitcnt lgkmcnt(0)
""")
    for i in range(4):
        a(f"v_mul_f32 v{24+i}, v{24+i}, v11")
        a(f"v_cndmask_b32 v{24+i}, 0, v{24+i}, s[{40+2*i}:{41+2*i}]")
    a(f"""
v_cvt_pk_f16_f32 v32, v24, v25
v_cvt_pk_f16_f32 v33, v26, v27
v_cvt_f32_f16 v34, v32
v_cvt_f32_f16 v35, v32 src0_sel:WORD_1
v_cvt_f32_f16 v36, v33
v_cvt_f32_f16 v37, v33 src0_sel:WORD_1
v_sub_f32 v34, v24, v34
v_sub_f32 v35, v25, v35
v_sub_f32 v36, v26, v36
v_sub_f32 v37, v27, v37
v_cvt_pk_f16_f32 v34, v34, v35
v_cvt_pk_f16_f32 v35, v36, v37
v_mul_f32 v13, v30, v11
{DEGRADE}
v_cmp_eq_u32 vcc, 254, v2
v_add_u32 v3, s3, v1
v_lshlrev_b32 v3, 12, v3
v_cndmask_b32 v32, v32, v12, vcc
v_cndmask_b32 v33, v33, v13, vcc
v_lshl_add_u32 v3, v2, 3, v3
s_mov_b32 s5, {KT}
buffer_store_dwordx2 v[32:33], v3, s[24:27], s5 offen
buffer_store_dwordx2 v[34:35], v3, s[24:27], s5 offen offset:2048
s_endpgm
""")
    a(f"""
L_prep_notk:
s_cmp_ge_u32 s2, {N_KGEN+N_XP}
s_cbranch_scc1 L_prep_w
s_load_dwordx2 s[8:9], s[0:1], 0
s_sub_u32 s3, s2, {N_KGEN}               ; block
v_and_b32 v1, 63, v0
v_lshrrev_b32 v4, 6, v0                 ; wave
s_lshl_b32 s4, s3, 16                   ; t0*1024
v_lshlrev_b32 v5, 13, v4
v_lshl_add_u32 v5, v1, 4, v5
v_add_u32 v5, s4, v5
v_add_u32 v6, 4096, v5
s_waitcnt lgkmcnt(0)
""")
    for i in range(8):
        src = "v5" if i < 4 else "v6"
        a(f"global_load_dwordx4 v[{16+4*i}:{19+4*i}], {src}, s[8:9] offset:{(i%4)*1024}")
    srd(a, 24, 22, 23, WS_BYTES)
    a(f"""
v_mul_u32_u24 v7, {8*1056}, v4
v_lshl_add_u32 v7, v1, 4, v7
s_mov_b32 s5, 0x3f803f80
""")
    for i in range(8):
        a(f"s_waitcnt vmcnt({7-i})")
        a(f"ds_write_b128 v7, v[{16+4*i}:{19+4*i}] offset:{i*1056}")
        a(f"v_dot2_f32_bf16 v{48+i}, v{16+4*i}, s5, 0")
        a(f"v_dot2_f32_bf16 v{56+i}, v{16+4*i}, v{16+4*i}, 0")
        for k in range(1, 4):
            a(f"v_dot2_f32_bf16 v{48+i}, v{16+4*i+k}, s5, v{48+i}")
            a(f"v_dot2_f32_bf16 v{56+i}, v{16+4*i+k}, v{16+4*i+k}, v{56+i}")
    a("s_nop 3")
    for i in range(8):
        a(f"v_permlane32_swap_b32 v{48+i}, v{56+i}")
    a("s_nop 1")
    for i in range(8):
        a(f"v_add_f32 v{48+i}, v{48+i}, v{56+i}")
    a("s_nop 1")
    for i in range(4):
        a(f"v_permlane16_swap_b32 v{48+i}, v{52+i}")
    a("s_nop 1")
    for i in range(4):
        a(f"v_add_f32 v{48+i}, v{48+i}, v{52+i}")
    for mod in ["quad_perm:[1,0,3,2]", "quad_perm:[2,3,0,1]", "row_half_mirror", "row_mirror"]:
        a("s_nop 1")
        for i in range(4):
            a(f"v_add_f32 v{48+i}, v{48+i}, v{48+i} {mod}")
    a(f"""
v_and_b32 v8, 3, v1
v_cmp_eq_u32 vcc, 1, v8
v_cmp_eq_u32 s[6:7], 2, v8
v_cmp_eq_u32 s[10:11], 3, v8
s_nop 1
v_cndmask_b32 v48, v48, v49, vcc
v_cndmask_b32 v48, v48, v50, s[6:7]
v_cndmask_b32 v48, v48, v51, s[10:11]
v_bfe_u32 v9, v1, 4, 1
v_lshl_add_u32 v8, v9, 2, v8
v_lshl_add_u32 v8, v4, 3, v8
s_lshl_b32 s4, s3, 6
v_add_u32 v8, s4, v8
v_lshlrev_b32 v8, 2, v8
v_lshrrev_b32 v9, 5, v1
v_lshl_add_u32 v8, v9, 13, v8
v_and_b32 v9, 15, v1
v_cmp_gt_u32 vcc, 4, v9
v_mov_b32 v49, 0
s_mov_b32 s5, {ST0}
s_mov_b32 s6, {ST2}
s_and_saveexec_b64 s[10:11], vcc
buffer_store_dword v48, v8, s[24:27], s5 offen
buffer_store_dword v49, v8, s[24:27], s6 offen
s_mov_b64 exec, s[10:11]
s_waitcnt lgkmcnt(0)
s_barrier
v_lshrrev_b32 v8, 4, v1
v_bfe_u32 v9, v1, 2, 2
v_lshl_add_u32 v9, v8, 3, v9            ; row = 8g + r
v_mul_u32_u24 v9, 1056, v9
v_and_b32 v10, 3, v1
v_lshl_add_u32 v9, v10, 3, v9
v_lshl_add_u32 v9, v4, 7, v9
v_and_b32 v10, 15, v1
v_lshl_add_u32 v10, v4, 6, v10
v_lshlrev_b32 v10, 12, v10
v_lshl_add_u32 v10, v8, 4, v10
s_lshl_b32 s4, s3, 7
v_add_u32 v10, s4, v10
""")
    n = 0
    for db in range(4):
        for hh in range(2):
            r = 16 + 4 * n
            off = db * 32 + hh * 32 * 1056
            a(f"ds_read_b64_tr_b16 v[{r}:{r+1}], v9 offset:{off}")
            a(f"ds_read_b64_tr_b16 v[{r+2}:{r+3}], v9 offset:{off+4*1056}")
            n += 1
    n = 0
    for db in range(4):
        a(f"s_mov_b32 s5, {XT0 + db*16*4096}")
        for hh in range(2):
            r = 16 + 4 * n
            a(f"s_waitcnt lgkmcnt({14-2*n})")
            a(f"buffer_store_dwordx4 v[{r}:{r+3}], v10, s[24:27], s5 offen offset:{hh*64}")
            n += 1
    a("s_endpgm")
    a(f"""
L_prep_w:
s_cmp_ge_u32 s2, {N_KGEN+N_XP+N_WGU}
s_cbranch_scc1 L_prep_wd
s_load_dwordx4 s[8:11], s[0:1], 80
s_sub_u32 s3, s2, {N_KGEN+N_XP}
s_lshr_b32 s4, s3, 4                    ; ct
s_and_b32 s5, s3, 15                    ; ks
v_lshrrev_b32 v1, 4, v0
v_and_b32 v2, 15, v0
s_lshl_b32 s6, s5, 5
v_add_u32 v3, s6, v1
s_movk_i32 s7, 2752
v_mul_lo_u32 v3, v3, s7
s_mul_i32 s6, s4, 192
v_lshl_add_u32 v3, v2, 4, v3
v_add_u32 v3, s6, v3
s_waitcnt lgkmcnt(0)
""")
    srd(a, 12, 8, 9, 512*1376*2)
    srd(a, 16, 10, 11, 512*1376*2)
    srd(a, 24, 22, 23, WS_BYTES)
    a(f"""
buffer_load_dwordx4 v[8:11], v3, s[12:15], 0 offen
buffer_load_dwordx4 v[12:15], v3, s[16:19], 0 offen
v_mul_u32_u24 v4, 272, v1
v_lshl_add_u32 v4, v2, 4, v4
v_and_b32 v5, 1, v0
v_mul_u32_u24 v5, 8704, v5
v_bfe_u32 v6, v0, 1, 3
v_lshl_add_u32 v5, v6, 1, v5
v_bfe_u32 v6, v0, 4, 2
v_mul_u32_u24 v6, {4*272}, v6
v_add_u32 v5, v5, v6
v_lshrrev_b32 v7, 6, v0
v_lshl_add_u32 v5, v7, 4, v5
s_waitcnt vmcnt(1)
ds_write_b128 v4, v[8:11]
s_waitcnt vmcnt(0)
ds_write_b128 v4, v[12:15] offset:8704
s_waitcnt lgkmcnt(0)
s_barrier
""")
    for rnd in range(2):
        for e in range(8):
            k = e if e < 4 else 16 + e - 4
            a(f"ds_read_u16 v{32+8*rnd+e}, v5 offset:{k*272 + rnd*128}")
    a(f"""
v_readfirstlane_b32 s6, v7
v_and_b32 v1, 63, v0
v_lshlrev_b32 v1, 4, v1
s_mul_i32 s7, s6, 11
s_lshr_b32 s7, s7, 5                    ; tt/3
s_mul_i32 s12, s7, 3
s_sub_u32 s12, s6, s12                  ; T
s_lshl_b32 s13, s4, 2
s_add_u32 s13, s13, s7
s_lshl_b32 s13, s13, 4
s_add_u32 s13, s13, s5
s_mul_i32 s13, s13, 3
s_add_u32 s13, s13, s12
s_lshl_b32 s13, s13, 10
s_add_u32 s13, s13, {WGU}
s_waitcnt lgkmcnt(8)
v_lshl_or_b32 v16, v33, 16, v32
v_lshl_or_b32 v17, v35, 16, v34
v_lshl_or_b32 v18, v37, 16, v36
v_lshl_or_b32 v19, v39, 16, v38
buffer_store_dwordx4 v[16:19], v1, s[24:27], s13 offen
s_cmp_ge_u32 s6, 4
s_cbranch_scc1 L_prep_end
s_add_u32 s6, s6, 8
s_mul_i32 s7, s6, 11
s_lshr_b32 s7, s7, 5
s_mul_i32 s12, s7, 3
s_sub_u32 s12, s6, s12
s_lshl_b32 s13, s4, 2
s_add_u32 s13, s13, s7
s_lshl_b32 s13, s13, 4
s_add_u32 s13, s13, s5
s_mul_i32 s13, s13, 3
s_add_u32 s13, s13, s12
s_lshl_b32 s13, s13, 10
s_add_u32 s13, s13, {WGU}
s_waitcnt lgkmcnt(0)
v_lshl_or_b32 v20, v41, 16, v40
v_lshl_or_b32 v21, v43, 16, v42
v_lshl_or_b32 v22, v45, 16, v44
v_lshl_or_b32 v23, v47, 16, v46
buffer_store_dwordx4 v[20:23], v1, s[24:27], s13 offen
s_endpgm
""")
    a(f"""
L_prep_wd:
s_load_dwordx2 s[8:9], s[0:1], 96
s_sub_u32 s3, s2, {N_KGEN+N_XP+N_WGU}
s_lshr_b32 s4, s3, 1                    ; ks
s_and_b32 s5, s3, 1                     ; dhalf
v_lshrrev_b32 v1, 5, v0                 ; row 0..15 (+16)
v_and_b32 v2, 31, v0
s_lshl_b32 s6, s4, 15                   ; ks*32*1024
s_lshl_b32 s7, s5, 9
s_add_u32 s6, s6, s7
v_lshlrev_b32 v3, 10, v1
v_lshl_add_u32 v3, v2, 4, v3
v_add_u32 v3, s6, v3
v_add_u32 v4, 16384, v3
s_waitcnt lgkmcnt(0)
global_load_dwordx4 v[8:11], v3, s[8:9]
global_load_dwordx4 v[12:15], v4, s[8:9]
""")
    srd(a, 24, 22, 23, WS_BYTES)
    a(f"""
v_mul_u32_u24 v4, 528, v1
v_lshl_add_u32 v4, v2, 4, v4
v_and_b32 v5, 15, v0
v_lshlrev_b32 v5, 1, v5
v_bfe_u32 v6, v0, 4, 2
v_mul_u32_u24 v6, {2*528}, v6
v_add_u32 v5, v5, v6
v_lshrrev_b32 v7, 6, v0
v_lshl_add_u32 v5, v7, 6, v5
s_waitcnt vmcnt(1)
ds_write_b128 v4, v[8:11]
s_waitcnt vmcnt(0)
ds_write_b128 v4, v[12:15] offset:{16*528}
s_waitcnt lgkmcnt(0)
s_barrier
""")
    for rnd in range(2):
        for e in range(8):
            f = 8 * (e >> 1) + (e & 1)
            a(f"ds_read_u16 v{32+8*rnd+e}, v5 offset:{f*528 + rnd*32}")
    a(f"""
v_readfirstlane_b32 s6, v7
v_and_b32 v1, 63, v0
v_lshlrev_b32 v1, 4, v1
s_lshr_b32 s7, s6, 1                    ; nt>>2
s_lshl_b32 s12, s5, 2
s_add_u32 s7, s7, s12                   ; dblk
s_mul_i32 s7, s7, 43
s_add_u32 s7, s7, s4
s_lshl_b32 s7, s7, 2
s_and_b32 s12, s6, 1
s_lshl_b32 s12, s12, 1
s_add_u32 s7, s7, s12
s_lshl_b32 s7, s7, 10
s_add_u32 s7, s7, {WD}
s_waitcnt lgkmcnt(8)
v_lshl_or_b32 v16, v33, 16, v32
v_lshl_or_b32 v17, v35, 16, v34
v_lshl_or_b32 v18, v37, 16, v36
v_lshl_or_b32 v19, v39, 16, v38
buffer_store_dwordx4 v[16:19], v1, s[24:27], s7 offen
s_waitcnt lgkmcnt(0)
v_lshl_or_b32 v20, v41, 16, v40
v_lshl_or_b32 v21, v43, 16, v42
v_lshl_or_b32 v22, v45, 16, v44
v_lshl_or_b32 v23, v47, 16, v46
buffer_store_dwordx4 v[20:23], v1, s[24:27], s7 offen offset:1024
L_prep_end:
s_endpgm
""")

HEADER = open("interleave_layers__ssm_conv_s4__swiglu_ffn__prompt.s.ref").read().split("; Override launch")[0]

def main():
    a = A()
    launches = [("prep_kernel", PREP_WGS, 512, PREP_LDS)]
    kds = [kd("prep_kernel", 80)]
    gen_prep(a)
    import importlib
    for modname in ["gen_conv", "gen_ffn"]:
        try:
            m = importlib.import_module(modname)
        except ImportError:
            continue
        m.emit(a, launches, kds)
    if len(sys.argv) > 2:
        order = sys.argv[2].split(",")
    out = HEADER
    order = ["prep_kernel", "conv1_kernel", "gateup1_kernel", "down1_kernel", "conv2_kernel", "gateup2_kernel", "down2_kernel"]
    ld = {l[0]: l for l in launches}
    for n in order:
        if n in ld:
            _, g, b, lds = ld[n]
            out += f"; @launch kernel={n} grid=({g},1,1) block=({b},1,1) lds={lds}\n"
    out += '.amdgcn_target "amdgcn-amd-amdhsa--gfx950"\n.text\n'
    out += a.text()
    out += '.section .rodata,"a"\n' + "".join(kds)
    path = sys.argv[1] if len(sys.argv) > 1 else "interleave_layers__ssm_conv_s4__swiglu_ffn__prompt.s"
    open(path, "w").write(out)
    print("wrote", path, len(out))

if __name__ == "__main__":
    sys.path.insert(0, "dev")
    sys.modules["gen"] = sys.modules["__main__"]
    main()
```

```python
import struct, sys, math

def f32bits(x):
    return struct.unpack("<I", struct.pack("<f", x))[0]

XT0 = 0x000000
XT1 = 0x200000
XT2 = 0x400000
XT3 = 0x600000
ST0 = 0x800000
ST2 = 0x810000
CSUM = 0x820000
KT  = 0x900000
WGU = 0xC00000
WD  = 0x1000000
HF  = 0x1200000
WS_BYTES = 268435456

LOG2E = 1.4426950408889634
INV2PI = 1.0 / (2 * math.pi)
C1 = struct.unpack("<f", struct.pack("<f", INV2PI))[0]
C2 = INV2PI - C1

class A:
    def __init__(self):
        self.l = []
    def __call__(self, s):
        for line in s.strip("\n").split("\n"):
            self.l.append("    " + line.strip() if not line.strip().endswith(":") else line.strip())
    def label(self, s):
        self.l.append(s + ":")
    def text(self):
        import hazard
        l = self.l
        if WGT:
            order = ["prep_kernel", "conv1_kernel", "gateup1_kernel", "down1_kernel", "conv2_kernel", "gateup2_kernel", "down2_kernel"]
            out = []; cur = 0
            for x in l:
                if x.endswith("_kernel:"): cur = order.index(x[:-1])
                if x.strip() == "s_endpgm": out += ["    " + y for y in wgt_end(cur).split("\n")]
                else: out.append(x)
            l = out
        pol = os.environ.get("STPOL", "")
        if pol:
            l = [x + " " + pol if x.strip().startswith("buffer_store_dwordx4") else x for x in l]
        return "\n".join(hazard.fix(l)) + "\n"

def srd(a, d, lo, hi, nbytes):
    a(f"""s_mov_b32 s{d}, s{lo}
s_mov_b32 s{d+1}, s{hi}
s_mov_b32 s{d+2}, {nbytes}
s_mov_b32 s{d+3}, 0x00020000""")

import os
STAMP = int(os.environ.get("STAMP", "0"))
HP = int(os.environ.get("HP", "0"))
def stamp(a, i):
    if STAMP:
        a(f"s_memtime s[{60+2*i}:{61+2*i}]")
def stamp_dump(a, n, slot_sreg, wgsel=0):
    if not STAMP: return
    a(f"""s_waitcnt lgkmcnt(0)
s_mov_b64 exec, -1
s_cmp_lg_u32 s2, {wgsel}
s_cbranch_scc1 L_sd_{len(a.l)}
s_load_dwordx2 s[56:57], s[0:1], 112
s_lshl_b32 s58, s{slot_sreg}, 5
v_mov_b32 v1, s58
s_waitcnt lgkmcnt(0)""")
    lab = [x for x in a.l if x.strip().startswith("s_cbranch_scc1 L_sd_")][-1].split()[-1]
    for i in range(n):
        a(f"v_mov_b32 v2, s{60+2*i}\nglobal_store_dword v1, v2, s[56:57] offset:{4*i}")
    a(f"s_waitcnt vmcnt(0)\n{lab}:")

WGT = int(os.environ.get("WGT", "0"))
WGT_BASE = 0x8000000
_kidx = [0]
def kernel_head(a, name):
    a.l.append(f".globl {name}")
    a.l.append(".p2align 8")
    a.l.append(f".type {name},@function")
    a.l.append(f"{name}:")
    if WGT:
        a("s_memrealtime s[80:81]\ns_memtime s[82:83]\ns_mov_b32 s88, s2\ns_mov_b64 s[90:91], s[0:1]")

def wgt_end(name_idx):
    return f"""s_memrealtime s[84:85]
s_memtime s[86:87]
s_load_dwordx2 s[92:93], s[90:91], 120
s_mov_b64 exec, 1
v_lshrrev_b32 v1, 6, v0
s_waitcnt lgkmcnt(0)
v_readfirstlane_b32 s89, v1
s_lshl_b32 s88, s88, 4
s_add_u32 s88, s88, s89
s_lshl_b32 s88, s88, 4
s_add_u32 s88, s88, {WGT_BASE + name_idx * 0x100000}
v_mov_b32 v1, s88
v_mov_b32 v4, s80
v_mov_b32 v5, s84
v_mov_b32 v6, s82
v_mov_b32 v7, s86
global_store_dwordx4 v1, v[4:7], s[92:93]
s_endpgm"""

def kd(name, vgpr, sgpr=96, accum=None):
    accum = accum if accum is not None else (vgpr + 3) // 4 * 4
    return f""".p2align 6
.amdhsa_kernel {name}
  .amdhsa_next_free_vgpr {vgpr}
  .amdhsa_next_free_sgpr {sgpr}
  .amdhsa_accum_offset {accum}
  .amdhsa_group_segment_fixed_size 0
  .amdhsa_kernarg_size 128
  .amdhsa_user_sgpr_count 2
  .amdhsa_user_sgpr_kernarg_segment_ptr 1
  .amdhsa_system_sgpr_workgroup_id_x 1
.end_amdhsa_kernel
"""

N_KGEN = 256
N_XP = 64
N_WGU = 240
N_WD = 86
N_CS = 22
PREP_WGS = N_KGEN + N_XP + N_WGU + N_WD + N_CS
PREP_LDS = 33792

def gen_prep(a):
    nb = int(os.environ.get("DEGRADE", "0"))
    m16 = (0xffff << nb) & 0xffff
    DEGRADE = f"v_and_b32 v32, {m16 | (m16 << 16):#x}, v32\nv_and_b32 v33, {m16 | (m16 << 16):#x}, v33" if nb else ""
    kernel_head(a, "prep_kernel")
    a(f"""
s_load_dwordx2 s[22:23], s[0:1], 120
s_cmp_ge_u32 s2, {PREP_WGS}
s_cbranch_scc1 L_prep_end
s_cmp_ge_u32 s2, {N_KGEN}
s_cbranch_scc1 L_prep_notk
""")
    a(f"""
s_load_dwordx8 s[8:15], s[0:1], 8
s_load_dwordx4 s[16:19], s[0:1], 40
s_load_dwordx2 s[20:21], s[0:1], 56
v_lshrrev_b32 v1, 8, v0                 ; ch
v_and_b32 v2, 127, v0                   ; n
s_lshl_b32 s3, s2, 1
v_add_u32 v3, s3, v1                    ; d
v_lshlrev_b32 v4, 7, v3
v_add_u32 v4, v4, v2
v_lshlrev_b32 v4, 1, v4                 ; (d*128+n)*2
v_lshlrev_b32 v5, 1, v3                 ; d*2
v_lshlrev_b32 v6, 11, v1
v_lshl_add_u32 v6, v2, 4, v6
s_mov_b32 s30, {f32bits(LOG2E):#x}
s_mov_b32 s31, {f32bits(C1):#x}
v_lshrrev_b32 v7, 6, v0
{"s_memtime s[60:61]" if STAMP else ""}
s_waitcnt lgkmcnt(0)
v_readfirstlane_b32 s59, v7
{"s_memtime s[62:63]" if STAMP else ""}
global_load_ushort v16, v5, s[20:21]
global_load_ushort v10, v4, s[8:9]
global_load_ushort v11, v4, s[10:11]
global_load_ushort v12, v4, s[12:13]
global_load_ushort v13, v4, s[14:15]
global_load_ushort v14, v4, s[16:17]
global_load_ushort v15, v4, s[18:19]
""")
    srd(a, 24, 22, 23, WS_BYTES)
    a(f"""
v_and_b32 v1, 63, v0                    ; lane
v_and_b32 v2, 15, v0                    ; j / col
v_lshrrev_b32 v3, 4, v1                 ; kg / g
v_lshrrev_b32 v4, 6, v0                 ; wave
v_lshlrev_b32 v5, 3, v2
v_cvt_f32_u32 v40, v5                   ; lo = 8j
v_lshrrev_b32 v5, 3, v2
v_lshlrev_b32 v5, 7, v5
v_and_b32 v7, 7, v2
v_add_u32 v5, v5, v7
v_cvt_f32_u32 v41, v5                   ; hi0
v_lshrrev_b32 v5, 2, v2
v_lshlrev_b32 v5, 7, v5
v_and_b32 v7, 3, v2
v_lshl_add_u32 v5, v7, 1, v5
v_add_u32 v5, 256, v5                   ; j<8 variant
v_subrev_u32 v7, 8, v2
v_lshrrev_b32 v7, 1, v7
v_lshlrev_b32 v7, 7, v7
v_and_b32 v8, 1, v2
v_lshl_add_u32 v7, v8, 2, v7
v_add_u32 v7, 512, v7                   ; j>=8 variant
v_cmp_gt_u32 vcc, 8, v2
v_lshlrev_b32 v8, 7, v2
v_add_u32 v8, 1024, v8
v_cndmask_b32 v5, v7, v5, vcc
v_cvt_f32_u32 v42, v5                   ; hi1
v_cvt_f32_u32 v43, v8                   ; hi2
v_lshrrev_b32 v5, 2, v4
v_lshlrev_b32 v5, 11, v5
v_and_b32 v7, 3, v4
v_lshl_add_u32 v5, v7, 9, v5
v_lshl_add_u32 v44, v3, 6, v5
s_waitcnt vmcnt(6)
v_lshlrev_b32 v16, 16, v16
v_mul_f32 v16, s30, v16
v_exp_f32 v16, v16
s_waitcnt vmcnt(0)
v_lshlrev_b32 v10, 16, v10
v_lshlrev_b32 v11, 16, v11
v_lshlrev_b32 v12, 16, v12
v_lshlrev_b32 v13, 16, v13
v_lshlrev_b32 v14, 16, v14
v_lshlrev_b32 v15, 16, v15
v_cvt_pk_bf16_f32 v16, v16, v16
v_lshlrev_b32 v16, 16, v16
v_mul_f32 v20, v16, v10
v_mul_f32 v20, s30, v20                 ; are2
v_mul_f32 v21, v16, v11
v_mul_f32 v21, s31, v21
v_mul_f32 v12, v16, v12                 ; dBre
v_mul_f32 v13, v16, v13                 ; dBim
v_mul_f32 v22, v14, v12
v_fma_f32 v22, -v15, v13, v22           ; Wre
v_mul_f32 v23, v14, v13
v_fma_f32 v23, v15, v12, v23            ; Wim
ds_write_b128 v6, v[20:23]
{"s_memtime s[64:65]" if STAMP else ""}
s_waitcnt lgkmcnt(0)
s_barrier
{"s_memtime s[66:67]" if STAMP else ""}
s_mov_b32 s4, 0
L_kg_loop:
ds_read_b128 v[8:11], v44
ds_read_b128 v[12:15], v44 offset:16
ds_read_b128 v[16:19], v44 offset:32
ds_read_b128 v[20:23], v44 offset:48
v_add_u32 v44, 256, v44
s_waitcnt lgkmcnt(0)
""")
    PR = [8, 12, 16, 20]
    def evalset(P, bside, HI, LO):
        for i in range(4):
            a(f"v_mul_f32 v{24+i}, v{PR[i]}, v{P}")
            a(f"v_mul_f32 v{28+i}, v{PR[i]+1}, v{P}")
        for i in range(4):
            a(f"v_exp_f32 v{24+i}, v{24+i}")
            a(f"v_fract_f32 v{28+i}, v{28+i}")
        for i in range(4):
            a(f"v_cos_f32 v{32+i}, v{28+i}")
            a(f"v_sin_f32 v{28+i}, v{28+i}")
        if bside:
            for i in range(4):
                a(f"v_mul_f32 v{36}, v{PR[i]+2}, v{32+i}")
                a(f"v_mul_f32 v{37}, v{PR[i]+2}, v{28+i}")
                a(f"v_fma_f32 v{36}, -v{PR[i]+3}, v{28+i}, v{36}")
                a(f"v_fma_f32 v{37}, v{PR[i]+3}, v{32+i}, v{37}")
                a(f"v_mul_f32 v{32+i}, v{24+i}, v{36}")
                a(f"v_mul_f32 v{28+i}, -v{24+i}, v{37}")
        else:
            for i in range(4):
                a(f"v_mul_f32 v{32+i}, v{24+i}, v{32+i}")
                a(f"v_mul_f32 v{28+i}, v{24+i}, v{28+i}")
        for i in range(4):
            a(f"v_cvt_pk_bf16_f32 v{HI+i}, v{32+i}, v{28+i}")
        for i in range(4):
            a(f"v_lshlrev_b32 v{24+i}, 16, v{HI+i}")
            a(f"v_and_b32 v{LO+i}, 0xffff0000, v{HI+i}")
        for i in range(4):
            a(f"v_sub_f32 v{32+i}, v{32+i}, v{24+i}")
            a(f"v_sub_f32 v{28+i}, v{28+i}, v{LO+i}")
        for i in range(4):
            a(f"v_cvt_pk_bf16_f32 v{LO+i}, v{32+i}, v{28+i}")
    evalset(40, True, 60, 64)
    a("s_cmp_eq_u32 s4, 0\ns_cbranch_scc0 L_kg_acc")
    for i in range(12):
        a(f"v_mov_b32 v{48+i}, 0")
    a("L_kg_acc:")
    for p in range(3):
        acc = 48 + 4 * p
        HI = 68 if p % 2 == 0 else 72
        HI, LO = (68, 72)
        evalset(41 + p, False, HI, LO)
        a(f"v_mfma_f32_16x16x32_bf16 v[{acc}:{acc+3}], v[{HI}:{HI+3}], v[60:63], v[{acc}:{acc+3}]")
        a(f"v_mfma_f32_16x16x32_bf16 v[{acc}:{acc+3}], v[{HI}:{HI+3}], v[64:67], v[{acc}:{acc+3}]")
        a(f"v_mfma_f32_16x16x32_bf16 v[{acc}:{acc+3}], v[{LO}:{LO+3}], v[60:63], v[{acc}:{acc+3}]")
    a(f"""
s_add_u32 s4, s4, 1
s_cmp_lt_u32 s4, 2
s_cbranch_scc1 L_kg_loop
{"s_memtime s[68:69]" if STAMP else ""}
v_mul_u32_u24 v5, 3072, v4
v_add_u32 v5, 4096, v5
v_lshrrev_b32 v6, 1, v3
v_lshlrev_b32 v6, 7, v6
v_and_b32 v7, 1, v3
v_lshl_add_u32 v6, v7, 2, v6
v_lshl_add_u32 v6, v2, 3, v6            ; q tile0
v_lshl_add_u32 v30, v6, 2, v5
v_lshlrev_b32 v6, 6, v3
v_lshl_add_u32 v7, v2, 2, v6
v_add_u32 v7, 256, v7                   ; g<2
v_lshl_add_u32 v8, v2, 1, v6
v_add_u32 v8, 256, v8                   ; g>=2: 384+64(g-2)+2col
v_cmp_gt_u32 vcc, 2, v3
v_mov_b32 v9, 32
v_cndmask_b32 v7, v8, v7, vcc
v_cndmask_b32 v9, v9, 2, vcc
v_lshl_add_u32 v31, v7, 2, v5
v_add_u32 v7, v7, v9
v_lshl_add_u32 v32, v7, 2, v5
v_add_u32 v6, v6, v2
v_add_u32 v6, 512, v6
v_lshl_add_u32 v33, v6, 2, v5
ds_write_b32 v30, v48
ds_write_b32 v30, v49 offset:4
ds_write_b32 v30, v50 offset:8
ds_write_b32 v30, v51 offset:12
ds_write_b32 v31, v52
ds_write_b32 v31, v53 offset:4
ds_write_b32 v32, v54
ds_write_b32 v32, v55 offset:4
ds_write_b32 v33, v56
ds_write_b32 v33, v57 offset:64
ds_write_b32 v33, v58 offset:128
ds_write_b32 v33, v59 offset:192
v_lshrrev_b32 v1, 8, v0
v_and_b32 v2, 255, v0
v_mul_u32_u24 v6, 12288, v1
v_add_u32 v6, 4096, v6
v_lshlrev_b32 v13, 2, v2                ; idx0
v_cmp_gt_u32 vcc, 816, v13
v_mov_b32 v14, 943
v_mov_b32 v15, 513
v_mov_b32 v16, 775
v_mov_b32 v17, 385
v_cndmask_b32 v14, v14, v16, vcc
v_cndmask_b32 v15, v15, v17, vcc
s_movk_i32 s5, 616
v_cmp_gt_u32 s[6:7], s5, v13
s_movk_i32 s33, 384
s_movk_i32 s34, 514
s_movk_i32 s35, 256
s_movk_i32 s36, 127
""")
    for i in range(4):
        a(f"""
v_add_u32 v20, {i}, v13
v_sub_u32 v21, 575, v20                 ; l
v_bfe_u32 v22, v21, 1, 1
v_add_u32 v22, v22, v21
v_lshrrev_b32 v22, 1, v22
v_add_u32 v22, 128, v22
v_min_u32 v22, s33, v22
v_cmp_ge_u32 vcc, s35, v21
v_sub_u32 v23, v14, v20                 ; i (far)
v_cmp_ge_u32 s[8:9], s34, v21
v_cndmask_b32 v22, v22, v21, vcc        ; q near
v_cmp_ge_u32 s[10:11], s36, v23
v_add_u32 v23, v23, v15                 ; q far
v_cndmask_b32 v22, v23, v22, s[6:7]
s_and_b64 s[8:9], s[8:9], s[6:7]
s_andn2_b64 s[10:11], s[10:11], s[6:7]
s_or_b64 s[{40+2*i}:{41+2*i}], s[8:9], s[10:11]
v_min_u32 v22, 767, v22
v_lshl_add_u32 v{36+i}, v22, 2, v6
""")
    a("s_waitcnt lgkmcnt(0)\ns_barrier")
    stamp(a, 5)
    for i in range(4):
        for w in range(4):
            a(f"ds_read_b32 v{48+4*i+w}, v{36+i} offset:{w*3072}")
    a("s_waitcnt lgkmcnt(0)")
    for i in range(4):
        a(f"v_add_f32 v{48+4*i}, v{48+4*i}, v{49+4*i}")
        a(f"v_add_f32 v{50+4*i}, v{50+4*i}, v{51+4*i}")
    for i in range(4):
        a(f"v_add_f32 v{24+i}, v{48+4*i}, v{50+4*i}")
    for i in range(4):
        a(f"v_cndmask_b32 v{24+i}, 0, v{24+i}, s[{40+2*i}:{41+2*i}]")
    a(f"""
v_max3_f32 v7, abs(v24), abs(v25), abs(v26)
v_max_f32 v7, abs(v27), v7
v_max_f32 v7, v7, v7 quad_perm:[1,0,3,2]
v_max_f32 v7, v7, v7 quad_perm:[2,3,0,1]
v_max_f32 v7, v7, v7 row_half_mirror
v_max_f32 v7, v7, v7 row_mirror
v_lshrrev_b32 v8, 4, v0
v_lshlrev_b32 v8, 2, v8
ds_write_b32 v8, v7 offset:28672
v_lshlrev_b32 v8, 6, v1
s_waitcnt lgkmcnt(0)
s_barrier
ds_read_b128 v[8:11], v8 offset:28672
ds_read_b128 v[12:15], v8 offset:28688
ds_read_b128 v[16:19], v8 offset:28704
ds_read_b128 v[20:23], v8 offset:28720
v_add_u32 v3, s3, v1
v_lshlrev_b32 v3, 12, v3
v_lshl_add_u32 v3, v2, 3, v3
s_mov_b32 s5, {KT}
v_cmp_eq_u32 vcc, 254, v2
s_movk_i32 s33, 162
v_cmp_eq_u32 s[6:7], s33, v2
s_waitcnt lgkmcnt(0)
v_max3_f32 v8, v8, v9, v10
v_max3_f32 v11, v11, v12, v13
v_max3_f32 v14, v14, v15, v16
v_max3_f32 v17, v17, v18, v19
v_max3_f32 v20, v20, v21, v22
v_max3_f32 v8, v8, v11, v14
v_max3_f32 v17, v17, v20, v23
v_max_f32 v10, v8, v17
v_lshrrev_b32 v10, 23, v10
v_max_u32 v10, 40, v10
v_min_u32 v10, 250, v10
v_sub_u32 v11, 268, v10
v_lshlrev_b32 v11, 23, v11              ; scale = 2^(14-e)
v_subrev_u32 v12, 24, v10
v_lshlrev_b32 v12, 23, v12
v_mul_f32 v24, v24, v11
v_mul_f32 v25, v25, v11
v_mul_f32 v26, v26, v11
v_mul_f32 v27, v27, v11
v_cvt_pk_f16_f32 v32, v24, v25
v_cvt_pk_f16_f32 v33, v26, v27
""")
    if HP:
        a("""
v_cvt_f32_f16 v34, v32
v_cvt_f32_f16 v35, v32 src0_sel:WORD_1
v_cvt_f32_f16 v36, v33
v_cvt_f32_f16 v37, v33 src0_sel:WORD_1
v_sub_f32 v34, v24, v34
v_sub_f32 v35, v25, v35
v_sub_f32 v36, v26, v36
v_sub_f32 v37, v27, v37
v_cvt_pk_f16_f32 v34, v34, v35
v_cvt_pk_f16_f32 v35, v36, v37
buffer_store_dwordx2 v[34:35], v3, s[24:27], s5 offen offset:2048
""")
    a(f"""
v_cndmask_b32 v32, v32, v12, vcc
s_andn2_b64 exec, exec, vcc
buffer_store_dwordx2 v[32:33], v3, s[24:27], s5 offen
s_mov_b64 exec, vcc
buffer_store_dword v32, v3, s[24:27], s5 offen
s_mov_b64 exec, s[6:7]
buffer_store_dword v24, v3, s[24:27], s5 offen offset:{2036 - 162*8}
""")
    stamp(a, 6)
    stamp_dump(a, 7, 59)
    a("s_endpgm")
    a(f"""
L_prep_notk:
s_setprio 3
s_cmp_ge_u32 s2, {N_KGEN+N_XP}
s_cbranch_scc1 L_prep_w
s_load_dwordx2 s[8:9], s[0:1], 0
s_sub_u32 s3, s2, {N_KGEN}               ; block
v_and_b32 v1, 63, v0
v_lshrrev_b32 v4, 6, v0                 ; wave
s_lshl_b32 s4, s3, 15                   ; t0*1024
v_lshlrev_b32 v5, 12, v4
v_lshl_add_u32 v5, v1, 4, v5
v_add_u32 v5, s4, v5
s_waitcnt lgkmcnt(0)
""")
    for i in range(4):
        a(f"global_load_dwordx4 v[{16+4*i}:{19+4*i}], v5, s[8:9] offset:{i*1024}")
    srd(a, 24, 22, 23, WS_BYTES)
    a(f"""
v_mul_u32_u24 v7, {4*1056}, v4
v_lshl_add_u32 v7, v1, 4, v7
s_mov_b32 s5, 0x3f803f80
""")
    for i in range(4):
        a(f"s_waitcnt vmcnt({3-i})")
        a(f"ds_write_b128 v7, v[{16+4*i}:{19+4*i}] offset:{i*1056}")
        a(f"v_dot2_f32_bf16 v{48+i}, v{16+4*i}, s5, 0")
        a(f"v_dot2_f32_bf16 v{52+i}, v{16+4*i}, v{16+4*i}, 0")
        for k in range(1, 4):
            a(f"v_dot2_f32_bf16 v{48+i}, v{16+4*i+k}, s5, v{48+i}")
            a(f"v_dot2_f32_bf16 v{52+i}, v{16+4*i+k}, v{16+4*i+k}, v{52+i}")
    for i in range(4):
        a(f"v_permlane32_swap_b32 v{48+i}, v{52+i}")
    for i in range(4):
        a(f"v_add_f32 v{48+i}, v{48+i}, v{52+i}")
    for i in range(2):
        a(f"v_permlane16_swap_b32 v{48+i}, v{50+i}")
    for i in range(2):
        a(f"v_add_f32 v{48+i}, v{48+i}, v{50+i}")
    for mod in ["quad_perm:[1,0,3,2]", "quad_perm:[2,3,0,1]", "row_half_mirror", "row_mirror"]:
        for i in range(2):
            a(f"v_add_f32 v{48+i}, v{48+i}, v{48+i} {mod}")
    a(f"""
v_and_b32 v8, 1, v1
v_cmp_eq_u32 vcc, 1, v8
v_bfe_u32 v9, v1, 4, 1
v_lshl_add_u32 v8, v9, 1, v8
v_cndmask_b32 v48, v48, v49, vcc
v_lshl_add_u32 v8, v4, 2, v8
s_lshl_b32 s4, s3, 5
v_add_u32 v8, s4, v8
v_lshlrev_b32 v8, 2, v8
v_lshrrev_b32 v9, 5, v1
v_lshl_add_u32 v8, v9, 13, v8
v_and_b32 v9, 15, v1
v_cmp_gt_u32 vcc, 2, v9
v_mov_b32 v49, 0
s_mov_b32 s5, {ST0}
s_mov_b32 s6, {ST2}
s_and_saveexec_b64 s[10:11], vcc
buffer_store_dword v48, v8, s[24:27], s5 offen
buffer_store_dword v49, v8, s[24:27], s6 offen
s_mov_b64 exec, s[10:11]
s_waitcnt lgkmcnt(0)
s_barrier
v_lshrrev_b32 v8, 4, v1
v_bfe_u32 v9, v1, 2, 2
v_lshl_add_u32 v9, v8, 3, v9            ; row = 8g + r
v_mul_u32_u24 v9, 1056, v9
v_and_b32 v10, 3, v1
v_lshl_add_u32 v9, v10, 3, v9
v_lshl_add_u32 v9, v4, 7, v9
v_and_b32 v10, 15, v1
v_lshl_add_u32 v10, v4, 6, v10
v_lshlrev_b32 v10, 12, v10
v_lshl_add_u32 v10, v8, 4, v10
s_lshl_b32 s4, s3, 6
v_add_u32 v10, s4, v10
""")
    for db in range(4):
        r = 16 + 4 * db
        a(f"ds_read_b64_tr_b16 v[{r}:{r+1}], v9 offset:{db*32}")
        a(f"ds_read_b64_tr_b16 v[{r+2}:{r+3}], v9 offset:{db*32+4*1056}")
    for db in range(4):
        r = 16 + 4 * db
        a(f"s_mov_b32 s5, {XT0 + db*16*4096}")
        a(f"s_waitcnt lgkmcnt({6-2*db})")
        a(f"buffer_store_dwordx4 v[{r}:{r+3}], v10, s[24:27], s5 offen")
    a("s_endpgm")
    a(f"""
L_prep_w:
s_cmp_ge_u32 s2, {N_KGEN+N_XP+N_WGU}
s_cbranch_scc1 L_prep_wd
s_load_dwordx4 s[8:11], s[0:1], 80
s_sub_u32 s3, s2, {N_KGEN+N_XP}
s_lshr_b32 s4, s3, 4                    ; ct
s_and_b32 s5, s3, 15                    ; ks
v_lshrrev_b32 v1, 4, v0
v_and_b32 v2, 15, v0
s_lshl_b32 s6, s5, 5
v_add_u32 v3, s6, v1
s_movk_i32 s7, 2752
v_mul_lo_u32 v3, v3, s7
s_mul_i32 s6, s4, 192
v_lshl_add_u32 v3, v2, 4, v3
v_add_u32 v3, s6, v3
s_waitcnt lgkmcnt(0)
""")
    srd(a, 12, 8, 9, 512*1376*2)
    srd(a, 16, 10, 11, 512*1376*2)
    srd(a, 24, 22, 23, WS_BYTES)
    a(f"""
buffer_load_dwordx4 v[8:11], v3, s[12:15], 0 offen
buffer_load_dwordx4 v[12:15], v3, s[16:19], 0 offen
v_mul_u32_u24 v4, 272, v1
v_lshl_add_u32 v4, v2, 4, v4
v_bfe_u32 v5, v0, 1, 1
v_mul_u32_u24 v5, 8704, v5
v_bfe_u32 v6, v0, 2, 2
v_lshl_add_u32 v5, v6, 2, v5
v_and_b32 v6, 1, v0
v_lshl_add_u32 v5, v6, 1, v5
v_bfe_u32 v6, v0, 4, 2
v_mul_u32_u24 v6, {4*272}, v6
v_add_u32 v5, v5, v6
v_lshrrev_b32 v7, 6, v0
v_lshl_add_u32 v5, v7, 4, v5
s_waitcnt vmcnt(1)
ds_write_b128 v4, v[8:11]
s_waitcnt vmcnt(0)
ds_write_b128 v4, v[12:15] offset:8704
s_waitcnt lgkmcnt(0)
s_barrier
""")
    for rnd in range(2):
        for e in range(8):
            k = e if e < 4 else 16 + e - 4
            a(f"ds_read_u16 v{32+8*rnd+e}, v5 offset:{k*272 + rnd*128}")
    a(f"""
v_readfirstlane_b32 s6, v7
v_and_b32 v1, 63, v0
v_lshlrev_b32 v1, 4, v1
s_mul_i32 s7, s6, 11
s_lshr_b32 s7, s7, 5                    ; tt/3
s_mul_i32 s12, s7, 3
s_sub_u32 s12, s6, s12                  ; T
s_lshl_b32 s13, s4, 2
s_add_u32 s13, s13, s7
s_lshl_b32 s13, s13, 4
s_add_u32 s13, s13, s5
s_mul_i32 s13, s13, 3
s_add_u32 s13, s13, s12
s_lshl_b32 s13, s13, 10
s_add_u32 s13, s13, {WGU}
s_waitcnt lgkmcnt(8)
v_lshl_or_b32 v16, v33, 16, v32
v_lshl_or_b32 v17, v35, 16, v34
v_lshl_or_b32 v18, v37, 16, v36
v_lshl_or_b32 v19, v39, 16, v38
buffer_store_dwordx4 v[16:19], v1, s[24:27], s13 offen
s_cmp_ge_u32 s6, 4
s_cbranch_scc1 L_prep_end
s_add_u32 s6, s6, 8
s_mul_i32 s7, s6, 11
s_lshr_b32 s7, s7, 5
s_mul_i32 s12, s7, 3
s_sub_u32 s12, s6, s12
s_lshl_b32 s13, s4, 2
s_add_u32 s13, s13, s7
s_lshl_b32 s13, s13, 4
s_add_u32 s13, s13, s5
s_mul_i32 s13, s13, 3
s_add_u32 s13, s13, s12
s_lshl_b32 s13, s13, 10
s_add_u32 s13, s13, {WGU}
s_waitcnt lgkmcnt(0)
v_lshl_or_b32 v20, v41, 16, v40
v_lshl_or_b32 v21, v43, 16, v42
v_lshl_or_b32 v22, v45, 16, v44
v_lshl_or_b32 v23, v47, 16, v46
buffer_store_dwordx4 v[20:23], v1, s[24:27], s13 offen
s_endpgm
""")
    a(f"""
L_prep_wd:
s_cmp_ge_u32 s2, {N_KGEN+N_XP+N_WGU+N_WD}
s_cbranch_scc1 L_prep_cs
s_load_dwordx2 s[8:9], s[0:1], 96
s_sub_u32 s3, s2, {N_KGEN+N_XP+N_WGU}
s_lshr_b32 s4, s3, 1                    ; ks
s_and_b32 s5, s3, 1                     ; dhalf
v_lshrrev_b32 v1, 5, v0                 ; row 0..15 (+16)
v_and_b32 v2, 31, v0
s_lshl_b32 s6, s4, 15                   ; ks*32*1024
s_lshl_b32 s7, s5, 9
s_add_u32 s6, s6, s7
v_lshlrev_b32 v3, 10, v1
v_lshl_add_u32 v3, v2, 4, v3
v_add_u32 v3, s6, v3
v_add_u32 v4, 16384, v3
s_waitcnt lgkmcnt(0)
global_load_dwordx4 v[8:11], v3, s[8:9]
global_load_dwordx4 v[12:15], v4, s[8:9]
""")
    srd(a, 24, 22, 23, WS_BYTES)
    a(f"""
v_mul_u32_u24 v4, 528, v1
v_lshl_add_u32 v4, v2, 4, v4
v_and_b32 v5, 15, v0
v_lshlrev_b32 v5, 1, v5
v_bfe_u32 v6, v0, 4, 2
v_mul_u32_u24 v6, {2*528}, v6
v_add_u32 v5, v5, v6
v_lshrrev_b32 v7, 6, v0
v_lshl_add_u32 v5, v7, 6, v5
s_waitcnt vmcnt(1)
ds_write_b128 v4, v[8:11]
s_waitcnt vmcnt(0)
ds_write_b128 v4, v[12:15] offset:{16*528}
s_waitcnt lgkmcnt(0)
s_barrier
""")
    for rnd in range(2):
        for e in range(8):
            f = 8 * (e >> 1) + (e & 1)
            a(f"ds_read_u16 v{32+8*rnd+e}, v5 offset:{f*528 + rnd*32}")
    a(f"""
v_readfirstlane_b32 s6, v7
v_and_b32 v1, 63, v0
v_lshlrev_b32 v1, 4, v1
s_lshr_b32 s7, s6, 1                    ; nt>>2
s_lshl_b32 s12, s5, 2
s_add_u32 s7, s7, s12                   ; dblk
s_mul_i32 s7, s7, 43
s_add_u32 s7, s7, s4
s_lshl_b32 s7, s7, 2
s_and_b32 s12, s6, 1
s_lshl_b32 s12, s12, 1
s_add_u32 s7, s7, s12
s_lshl_b32 s7, s7, 10
s_add_u32 s7, s7, {WD}
s_waitcnt lgkmcnt(8)
v_lshl_or_b32 v16, v33, 16, v32
v_lshl_or_b32 v17, v35, 16, v34
v_lshl_or_b32 v18, v37, 16, v36
v_lshl_or_b32 v19, v39, 16, v38
buffer_store_dwordx4 v[16:19], v1, s[24:27], s7 offen
s_waitcnt lgkmcnt(0)
v_lshl_or_b32 v20, v41, 16, v40
v_lshl_or_b32 v21, v43, 16, v42
v_lshl_or_b32 v22, v45, 16, v44
v_lshl_or_b32 v23, v47, 16, v46
buffer_store_dwordx4 v[20:23], v1, s[24:27], s7 offen offset:1024
s_endpgm
""")
    a(f"""
L_prep_cs:
s_sub_u32 s3, s2, {N_KGEN+N_XP+N_WGU+N_WD}
s_and_b32 s4, s3, 1                     ; matrix
s_lshr_b32 s5, s3, 1
s_lshl_b32 s6, s4, 3
s_add_u32 s6, s6, 80
s_load_dwordx2 s[8:9], s[0:1], s6
v_and_b32 v1, 63, v0
v_lshrrev_b32 v2, 6, v0
s_movk_i32 s7, 2752
v_lshlrev_b32 v3, 6, v2
v_mul_lo_u32 v3, v3, s7
v_lshl_add_u32 v3, v1, 2, v3
s_lshl_b32 s10, s5, 8
v_add_u32 v3, s10, v3
s_waitcnt lgkmcnt(0)
""")
    srd(a, 12, 8, 9, 512*1376*2)
    srd(a, 24, 22, 23, WS_BYTES)
    a("""
v_mov_b32 v4, 0
v_mov_b32 v5, 0
s_mov_b32 s10, 0
s_mov_b32 s11, 0
L_cs_loop:""")
    for i in range(16):
        a(f"buffer_load_dword v{8+i}, v3, s[12:15], s10 offen\ns_add_u32 s10, s10, 2752")
    for i in range(16):
        a(f"s_waitcnt vmcnt({15-i})\nv_lshlrev_b32 v6, 16, v{8+i}\nv_and_b32 v7, 0xffff0000, v{8+i}\nv_add_f32 v4, v4, v6\nv_add_f32 v5, v5, v7")
    a(f"""
s_add_u32 s11, s11, 1
s_cmp_lt_u32 s11, 4
s_cbranch_scc1 L_cs_loop
v_lshlrev_b32 v6, 3, v0
ds_write_b64 v6, v[4:5]
s_waitcnt lgkmcnt(0)
s_barrier
v_cmp_gt_u32 vcc, 64, v0
s_and_saveexec_b64 s[16:17], vcc
s_cbranch_execz L_prep_end
""")
    for w in range(8):
        a(f"ds_read_b64 v[{8+2*w}:{9+2*w}], v6 offset:{w*512}")
    a("s_waitcnt lgkmcnt(0)")
    for w in range(1, 8):
        a(f"v_add_f32 v8, v8, v{8+2*w}\nv_add_f32 v9, v9, v{9+2*w}")
    a(f"""
s_lshl_b32 s10, s5, 9
s_lshl_b32 s11, s4, 13
s_add_u32 s10, s10, s11
s_add_u32 s10, s10, {CSUM}
buffer_store_dwordx2 v[8:9], v6, s[24:27], s10 offen
L_prep_end:
s_endpgm
""")

HEADER = open("interleave_layers__ssm_conv_s4__swiglu_ffn__prompt.s.ref").read().split("; Override launch")[0]

def main():
    a = A()
    launches = [("prep_kernel", PREP_WGS, 512, PREP_LDS)]
    kds = [kd("prep_kernel", 80)]
    gen_prep(a)
    import importlib
    for modname in ["gen_conv", "gen_ffn"]:
        try:
            m = importlib.import_module(modname)
        except ImportError:
            continue
        m.emit(a, launches, kds)
    if len(sys.argv) > 2:
        order = sys.argv[2].split(",")
    out = HEADER
    order = ["prep_kernel", "conv1_kernel", "gateup1_kernel", "down1_kernel", "conv2_kernel", "gateup2_kernel", "down2_kernel"]
    ld = {l[0]: l for l in launches}
    for n in order:
        if n in ld:
            _, g, b, lds = ld[n]
            out += f"; @launch kernel={n} grid=({g},1,1) block=({b},1,1) lds={lds}\n"
    out += '.amdgcn_target "amdgcn-amd-amdhsa--gfx950"\n.text\n'
    out += a.text()
    out += '.section .rodata,"a"\n' + "".join(kds)
    path = sys.argv[1] if len(sys.argv) > 1 else "interleave_layers__ssm_conv_s4__swiglu_ffn__prompt.s"
    open(path, "w").write(out)
    print("wrote", path, len(out))

if __name__ == "__main__":
    sys.path.insert(0, "dev")
    sys.modules["gen"] = sys.modules["__main__"]
    main()
```

```python
import struct, sys, math

def f32bits(x):
    return struct.unpack("<I", struct.pack("<f", x))[0]

XT0 = 0x000000
XT1 = 0x200000
XT2 = 0x400000
XT3 = 0x600000
ST0 = 0x800000
ST2 = 0x810000
CSUM = 0x820000
BAR = 0x830000
KT  = 0x900000
WGU = 0xC00000
WD  = 0x1000000
HF  = 0x1200000
WS_BYTES = 268435456

LOG2E = 1.4426950408889634
INV2PI = 1.0 / (2 * math.pi)
C1 = struct.unpack("<f", struct.pack("<f", INV2PI))[0]
C2 = INV2PI - C1

class A:
    def __init__(self):
        self.l = []
    def __call__(self, s):
        for line in s.strip("\n").split("\n"):
            self.l.append("    " + line.strip() if not line.strip().endswith(":") else line.strip())
    def label(self, s):
        self.l.append(s + ":")
    def text(self):
        import hazard
        l = self.l
        if WGT:
            order = ["prep_kernel", "conv1_kernel", "gateup1_kernel", "down1_kernel", "conv2_kernel", "gateup2_kernel", "down2_kernel"]
            if int(os.environ.get("MEGA", "1")): order = ["prep_kernel", "mega_kernel"]
            out = []; cur = 0
            for x in l:
                if x.endswith("_kernel:"): cur = order.index(x[:-1])
                if x.strip() == "s_endpgm": out += ["    " + y for y in wgt_end(cur).split("\n")]
                else: out.append(x)
            l = out
        pol = os.environ.get("STPOL", "")
        if pol:
            l = [x + " " + pol if x.strip().startswith("buffer_store_dwordx4") else x for x in l]
        return "\n".join(hazard.fix(l)) + "\n"

def srd(a, d, lo, hi, nbytes):
    a(f"""s_mov_b32 s{d}, s{lo}
s_mov_b32 s{d+1}, s{hi}
s_mov_b32 s{d+2}, {nbytes}
s_mov_b32 s{d+3}, 0x00020000""")

import os
STAMP = int(os.environ.get("STAMP", "0"))
HP = int(os.environ.get("HP", "0"))
def stamp(a, i):
    if STAMP:
        a(f"s_memtime s[{60+2*i}:{61+2*i}]")
def stamp_dump(a, n, slot_sreg, wgsel=0):
    if not STAMP: return
    a(f"""s_waitcnt lgkmcnt(0)
s_mov_b64 exec, -1
s_cmp_lg_u32 s2, {wgsel}
s_cbranch_scc1 L_sd_{len(a.l)}
s_load_dwordx2 s[56:57], s[0:1], 112
s_lshl_b32 s58, s{slot_sreg}, 5
v_mov_b32 v1, s58
s_waitcnt lgkmcnt(0)""")
    lab = [x for x in a.l if x.strip().startswith("s_cbranch_scc1 L_sd_")][-1].split()[-1]
    for i in range(n):
        a(f"v_mov_b32 v2, s{60+2*i}\nglobal_store_dword v1, v2, s[56:57] offset:{4*i}")
    a(f"s_waitcnt vmcnt(0)\n{lab}:")

WGT = int(os.environ.get("WGT", "0"))
WGT_BASE = 0x8000000
_kidx = [0]
def kernel_head(a, name):
    a.l.append(f".globl {name}")
    a.l.append(".p2align 8")
    a.l.append(f".type {name},@function")
    a.l.append(f"{name}:")
    if WGT:
        a("s_memrealtime s[80:81]\ns_memtime s[82:83]\ns_mov_b32 s88, s2\ns_mov_b64 s[90:91], s[0:1]")

def wgt_end(name_idx):
    return f"""s_memrealtime s[84:85]
s_memtime s[86:87]
s_load_dwordx2 s[92:93], s[90:91], 120
s_mov_b64 exec, 1
v_lshrrev_b32 v1, 6, v0
s_waitcnt lgkmcnt(0)
v_readfirstlane_b32 s89, v1
s_lshl_b32 s88, s88, 4
s_add_u32 s88, s88, s89
s_lshl_b32 s88, s88, 4
s_add_u32 s88, s88, {WGT_BASE + name_idx * 0x100000}
v_mov_b32 v1, s88
v_mov_b32 v4, s80
v_mov_b32 v5, s84
v_mov_b32 v6, s82
v_mov_b32 v7, s86
global_store_dwordx4 v1, v[4:7], s[92:93]
s_endpgm"""

def kd(name, vgpr, sgpr=96, accum=None):
    accum = accum if accum is not None else (vgpr + 3) // 4 * 4
    return f""".p2align 6
.amdhsa_kernel {name}
  .amdhsa_next_free_vgpr {vgpr}
  .amdhsa_next_free_sgpr {sgpr}
  .amdhsa_accum_offset {accum}
  .amdhsa_group_segment_fixed_size 0
  .amdhsa_kernarg_size 128
  .amdhsa_user_sgpr_count 2
  .amdhsa_user_sgpr_kernarg_segment_ptr 1
  .amdhsa_system_sgpr_workgroup_id_x 1
.end_amdhsa_kernel
"""

N_KGEN = 256
N_XP = 64
N_WGU = 240
N_WD = 86
N_CS = 22
PREP_WGS = N_KGEN + N_XP + N_WGU + N_WD + N_CS
PREP_LDS = 33792

def gen_prep(a):
    nb = int(os.environ.get("DEGRADE", "0"))
    m16 = (0xffff << nb) & 0xffff
    DEGRADE = f"v_and_b32 v32, {m16 | (m16 << 16):#x}, v32\nv_and_b32 v33, {m16 | (m16 << 16):#x}, v33" if nb else ""
    kernel_head(a, "prep_kernel")
    a(f"""
s_load_dwordx2 s[22:23], s[0:1], 120
s_cmp_ge_u32 s2, {PREP_WGS}
s_cbranch_scc1 L_prep_end
s_cmp_ge_u32 s2, {N_KGEN}
s_cbranch_scc1 L_prep_notk
""")
    a(f"""
s_load_dwordx8 s[8:15], s[0:1], 8
s_load_dwordx4 s[16:19], s[0:1], 40
s_load_dwordx2 s[20:21], s[0:1], 56
v_lshrrev_b32 v1, 8, v0                 ; ch
v_and_b32 v2, 127, v0                   ; n
s_lshl_b32 s3, s2, 1
v_add_u32 v3, s3, v1                    ; d
v_lshlrev_b32 v4, 7, v3
v_add_u32 v4, v4, v2
v_lshlrev_b32 v4, 1, v4                 ; (d*128+n)*2
v_lshlrev_b32 v5, 1, v3                 ; d*2
v_lshlrev_b32 v6, 11, v1
v_lshl_add_u32 v6, v2, 4, v6
s_mov_b32 s30, {f32bits(LOG2E):#x}
s_mov_b32 s31, {f32bits(C1):#x}
v_lshrrev_b32 v7, 6, v0
{"s_memtime s[60:61]" if STAMP else ""}
s_waitcnt lgkmcnt(0)
v_readfirstlane_b32 s59, v7
{"s_memtime s[62:63]" if STAMP else ""}
global_load_ushort v16, v5, s[20:21]
global_load_ushort v10, v4, s[8:9]
global_load_ushort v11, v4, s[10:11]
global_load_ushort v12, v4, s[12:13]
global_load_ushort v13, v4, s[14:15]
global_load_ushort v14, v4, s[16:17]
global_load_ushort v15, v4, s[18:19]
""")
    srd(a, 24, 22, 23, WS_BYTES)
    a(f"""
v_and_b32 v1, 63, v0                    ; lane
v_and_b32 v2, 15, v0                    ; j / col
v_lshrrev_b32 v3, 4, v1                 ; kg / g
v_lshrrev_b32 v4, 6, v0                 ; wave
v_lshlrev_b32 v5, 3, v2
v_cvt_f32_u32 v40, v5                   ; lo = 8j
v_lshrrev_b32 v5, 3, v2
v_lshlrev_b32 v5, 7, v5
v_and_b32 v7, 7, v2
v_add_u32 v5, v5, v7
v_cvt_f32_u32 v41, v5                   ; hi0
v_lshrrev_b32 v5, 2, v2
v_lshlrev_b32 v5, 7, v5
v_and_b32 v7, 3, v2
v_lshl_add_u32 v5, v7, 1, v5
v_add_u32 v5, 256, v5                   ; j<8 variant
v_subrev_u32 v7, 8, v2
v_lshrrev_b32 v7, 1, v7
v_lshlrev_b32 v7, 7, v7
v_and_b32 v8, 1, v2
v_lshl_add_u32 v7, v8, 2, v7
v_add_u32 v7, 512, v7                   ; j>=8 variant
v_cmp_gt_u32 vcc, 8, v2
v_lshlrev_b32 v8, 7, v2
v_add_u32 v8, 1024, v8
v_cndmask_b32 v5, v7, v5, vcc
v_cvt_f32_u32 v42, v5                   ; hi1
v_cvt_f32_u32 v43, v8                   ; hi2
v_lshrrev_b32 v5, 2, v4
v_lshlrev_b32 v5, 11, v5
v_and_b32 v7, 3, v4
v_lshl_add_u32 v5, v7, 9, v5
v_lshl_add_u32 v44, v3, 6, v5
s_waitcnt vmcnt(6)
v_lshlrev_b32 v16, 16, v16
v_mul_f32 v16, s30, v16
v_exp_f32 v16, v16
s_waitcnt vmcnt(0)
v_lshlrev_b32 v10, 16, v10
v_lshlrev_b32 v11, 16, v11
v_lshlrev_b32 v12, 16, v12
v_lshlrev_b32 v13, 16, v13
v_lshlrev_b32 v14, 16, v14
v_lshlrev_b32 v15, 16, v15
v_cvt_pk_bf16_f32 v16, v16, v16
v_lshlrev_b32 v16, 16, v16
v_mul_f32 v20, v16, v10
v_mul_f32 v20, s30, v20                 ; are2
v_mul_f32 v21, v16, v11
v_mul_f32 v21, s31, v21
v_mul_f32 v12, v16, v12                 ; dBre
v_mul_f32 v13, v16, v13                 ; dBim
v_mul_f32 v22, v14, v12
v_fma_f32 v22, -v15, v13, v22           ; Wre
v_mul_f32 v23, v14, v13
v_fma_f32 v23, v15, v12, v23            ; Wim
ds_write_b128 v6, v[20:23]
{"s_memtime s[64:65]" if STAMP else ""}
s_waitcnt lgkmcnt(0)
s_barrier
{"s_memtime s[66:67]" if STAMP else ""}
s_mov_b32 s4, 0
L_kg_loop:
ds_read_b128 v[8:11], v44
ds_read_b128 v[12:15], v44 offset:16
ds_read_b128 v[16:19], v44 offset:32
ds_read_b128 v[20:23], v44 offset:48
v_add_u32 v44, 256, v44
s_waitcnt lgkmcnt(0)
""")
    PR = [8, 12, 16, 20]
    def evalset(P, bside, HI, LO):
        for i in range(4):
            a(f"v_mul_f32 v{24+i}, v{PR[i]}, v{P}")
            a(f"v_mul_f32 v{28+i}, v{PR[i]+1}, v{P}")
        for i in range(4):
            a(f"v_exp_f32 v{24+i}, v{24+i}")
            a(f"v_fract_f32 v{28+i}, v{28+i}")
        for i in range(4):
            a(f"v_cos_f32 v{32+i}, v{28+i}")
            a(f"v_sin_f32 v{28+i}, v{28+i}")
        if bside:
            for i in range(4):
                a(f"v_mul_f32 v{36}, v{PR[i]+2}, v{32+i}")
                a(f"v_mul_f32 v{37}, v{PR[i]+2}, v{28+i}")
                a(f"v_fma_f32 v{36}, -v{PR[i]+3}, v{28+i}, v{36}")
                a(f"v_fma_f32 v{37}, v{PR[i]+3}, v{32+i}, v{37}")
                a(f"v_mul_f32 v{32+i}, v{24+i}, v{36}")
                a(f"v_mul_f32 v{28+i}, -v{24+i}, v{37}")
        else:
            for i in range(4):
                a(f"v_mul_f32 v{32+i}, v{24+i}, v{32+i}")
                a(f"v_mul_f32 v{28+i}, v{24+i}, v{28+i}")
        for i in range(4):
            a(f"v_cvt_pk_bf16_f32 v{HI+i}, v{32+i}, v{28+i}")
        for i in range(4):
            a(f"v_lshlrev_b32 v{24+i}, 16, v{HI+i}")
            a(f"v_and_b32 v{LO+i}, 0xffff0000, v{HI+i}")
        for i in range(4):
            a(f"v_sub_f32 v{32+i}, v{32+i}, v{24+i}")
            a(f"v_sub_f32 v{28+i}, v{28+i}, v{LO+i}")
        for i in range(4):
            a(f"v_cvt_pk_bf16_f32 v{LO+i}, v{32+i}, v{28+i}")
    evalset(40, True, 60, 64)
    a("s_cmp_eq_u32 s4, 0\ns_cbranch_scc0 L_kg_acc")
    for i in range(12):
        a(f"v_mov_b32 v{48+i}, 0")
    a("L_kg_acc:")
    for p in range(3):
        acc = 48 + 4 * p
        HI = 68 if p % 2 == 0 else 72
        HI, LO = (68, 72)
        evalset(41 + p, False, HI, LO)
        a(f"v_mfma_f32_16x16x32_bf16 v[{acc}:{acc+3}], v[{HI}:{HI+3}], v[60:63], v[{acc}:{acc+3}]")
        a(f"v_mfma_f32_16x16x32_bf16 v[{acc}:{acc+3}], v[{HI}:{HI+3}], v[64:67], v[{acc}:{acc+3}]")
        a(f"v_mfma_f32_16x16x32_bf16 v[{acc}:{acc+3}], v[{LO}:{LO+3}], v[60:63], v[{acc}:{acc+3}]")
    a(f"""
s_add_u32 s4, s4, 1
s_cmp_lt_u32 s4, 2
s_cbranch_scc1 L_kg_loop
{"s_memtime s[68:69]" if STAMP else ""}
v_mul_u32_u24 v5, 3072, v4
v_add_u32 v5, 4096, v5
v_lshrrev_b32 v6, 1, v3
v_lshlrev_b32 v6, 7, v6
v_and_b32 v7, 1, v3
v_lshl_add_u32 v6, v7, 2, v6
v_lshl_add_u32 v6, v2, 3, v6            ; q tile0
v_lshl_add_u32 v30, v6, 2, v5
v_lshlrev_b32 v6, 6, v3
v_lshl_add_u32 v7, v2, 2, v6
v_add_u32 v7, 256, v7                   ; g<2
v_lshl_add_u32 v8, v2, 1, v6
v_add_u32 v8, 256, v8                   ; g>=2: 384+64(g-2)+2col
v_cmp_gt_u32 vcc, 2, v3
v_mov_b32 v9, 32
v_cndmask_b32 v7, v8, v7, vcc
v_cndmask_b32 v9, v9, 2, vcc
v_lshl_add_u32 v31, v7, 2, v5
v_add_u32 v7, v7, v9
v_lshl_add_u32 v32, v7, 2, v5
v_add_u32 v6, v6, v2
v_add_u32 v6, 512, v6
v_lshl_add_u32 v33, v6, 2, v5
ds_write_b32 v30, v48
ds_write_b32 v30, v49 offset:4
ds_write_b32 v30, v50 offset:8
ds_write_b32 v30, v51 offset:12
ds_write_b32 v31, v52
ds_write_b32 v31, v53 offset:4
ds_write_b32 v32, v54
ds_write_b32 v32, v55 offset:4
ds_write_b32 v33, v56
ds_write_b32 v33, v57 offset:64
ds_write_b32 v33, v58 offset:128
ds_write_b32 v33, v59 offset:192
v_lshrrev_b32 v1, 8, v0
v_and_b32 v2, 255, v0
v_mul_u32_u24 v6, 12288, v1
v_add_u32 v6, 4096, v6
v_lshlrev_b32 v13, 2, v2                ; idx0
v_cmp_gt_u32 vcc, 816, v13
v_mov_b32 v14, 943
v_mov_b32 v15, 513
v_mov_b32 v16, 775
v_mov_b32 v17, 385
v_cndmask_b32 v14, v14, v16, vcc
v_cndmask_b32 v15, v15, v17, vcc
s_movk_i32 s5, 616
v_cmp_gt_u32 s[6:7], s5, v13
s_movk_i32 s33, 384
s_movk_i32 s34, 514
s_movk_i32 s35, 256
s_movk_i32 s36, 127
""")
    for i in range(4):
        a(f"""
v_add_u32 v20, {i}, v13
v_sub_u32 v21, 575, v20                 ; l
v_bfe_u32 v22, v21, 1, 1
v_add_u32 v22, v22, v21
v_lshrrev_b32 v22, 1, v22
v_add_u32 v22, 128, v22
v_min_u32 v22, s33, v22
v_cmp_ge_u32 vcc, s35, v21
v_sub_u32 v23, v14, v20                 ; i (far)
v_cmp_ge_u32 s[8:9], s34, v21
v_cndmask_b32 v22, v22, v21, vcc        ; q near
v_cmp_ge_u32 s[10:11], s36, v23
v_add_u32 v23, v23, v15                 ; q far
v_cndmask_b32 v22, v23, v22, s[6:7]
s_and_b64 s[8:9], s[8:9], s[6:7]
s_andn2_b64 s[10:11], s[10:11], s[6:7]
s_or_b64 s[{40+2*i}:{41+2*i}], s[8:9], s[10:11]
v_min_u32 v22, 767, v22
v_lshl_add_u32 v{36+i}, v22, 2, v6
""")
    a("s_waitcnt lgkmcnt(0)\ns_barrier")
    stamp(a, 5)
    for i in range(4):
        for w in range(4):
            a(f"ds_read_b32 v{48+4*i+w}, v{36+i} offset:{w*3072}")
    a("s_waitcnt lgkmcnt(0)")
    for i in range(4):
        a(f"v_add_f32 v{48+4*i}, v{48+4*i}, v{49+4*i}")
        a(f"v_add_f32 v{50+4*i}, v{50+4*i}, v{51+4*i}")
    for i in range(4):
        a(f"v_add_f32 v{24+i}, v{48+4*i}, v{50+4*i}")
    for i in range(4):
        a(f"v_cndmask_b32 v{24+i}, 0, v{24+i}, s[{40+2*i}:{41+2*i}]")
    a(f"""
v_max3_f32 v7, abs(v24), abs(v25), abs(v26)
v_max_f32 v7, abs(v27), v7
v_max_f32 v7, v7, v7 quad_perm:[1,0,3,2]
v_max_f32 v7, v7, v7 quad_perm:[2,3,0,1]
v_max_f32 v7, v7, v7 row_half_mirror
v_max_f32 v7, v7, v7 row_mirror
v_lshrrev_b32 v8, 4, v0
v_lshlrev_b32 v8, 2, v8
ds_write_b32 v8, v7 offset:28672
v_lshlrev_b32 v8, 6, v1
s_waitcnt lgkmcnt(0)
s_barrier
ds_read_b128 v[8:11], v8 offset:28672
ds_read_b128 v[12:15], v8 offset:28688
ds_read_b128 v[16:19], v8 offset:28704
ds_read_b128 v[20:23], v8 offset:28720
v_add_u32 v3, s3, v1
v_lshlrev_b32 v3, 12, v3
v_lshl_add_u32 v3, v2, 3, v3
s_mov_b32 s5, {KT}
v_cmp_eq_u32 vcc, 254, v2
s_movk_i32 s33, 162
v_cmp_eq_u32 s[6:7], s33, v2
s_waitcnt lgkmcnt(0)
v_max3_f32 v8, v8, v9, v10
v_max3_f32 v11, v11, v12, v13
v_max3_f32 v14, v14, v15, v16
v_max3_f32 v17, v17, v18, v19
v_max3_f32 v20, v20, v21, v22
v_max3_f32 v8, v8, v11, v14
v_max3_f32 v17, v17, v20, v23
v_max_f32 v10, v8, v17
v_lshrrev_b32 v10, 23, v10
v_max_u32 v10, 40, v10
v_min_u32 v10, 250, v10
v_sub_u32 v11, 268, v10
v_lshlrev_b32 v11, 23, v11              ; scale = 2^(14-e)
v_subrev_u32 v12, 24, v10
v_lshlrev_b32 v12, 23, v12
v_mul_f32 v24, v24, v11
v_mul_f32 v25, v25, v11
v_mul_f32 v26, v26, v11
v_mul_f32 v27, v27, v11
v_cvt_pk_f16_f32 v32, v24, v25
v_cvt_pk_f16_f32 v33, v26, v27
""")
    if HP:
        a("""
v_cvt_f32_f16 v34, v32
v_cvt_f32_f16 v35, v32 src0_sel:WORD_1
v_cvt_f32_f16 v36, v33
v_cvt_f32_f16 v37, v33 src0_sel:WORD_1
v_sub_f32 v34, v24, v34
v_sub_f32 v35, v25, v35
v_sub_f32 v36, v26, v36
v_sub_f32 v37, v27, v37
v_cvt_pk_f16_f32 v34, v34, v35
v_cvt_pk_f16_f32 v35, v36, v37
buffer_store_dwordx2 v[34:35], v3, s[24:27], s5 offen offset:2048
""")
    a(f"""
v_cndmask_b32 v32, v32, v12, vcc
s_andn2_b64 exec, exec, vcc
buffer_store_dwordx2 v[32:33], v3, s[24:27], s5 offen
s_mov_b64 exec, vcc
buffer_store_dword v32, v3, s[24:27], s5 offen
s_mov_b64 exec, s[6:7]
buffer_store_dword v24, v3, s[24:27], s5 offen offset:{2036 - 162*8}
""")
    stamp(a, 6)
    stamp_dump(a, 7, 59)
    a("s_endpgm")
    a(f"""
L_prep_notk:
s_setprio 3
s_cmp_ge_u32 s2, {N_KGEN+N_XP}
s_cbranch_scc1 L_prep_w
s_load_dwordx2 s[8:9], s[0:1], 0
s_sub_u32 s3, s2, {N_KGEN}               ; block
v_and_b32 v1, 63, v0
v_lshrrev_b32 v4, 6, v0                 ; wave
s_lshl_b32 s4, s3, 15                   ; t0*1024
v_lshlrev_b32 v5, 12, v4
v_lshl_add_u32 v5, v1, 4, v5
v_add_u32 v5, s4, v5
s_waitcnt lgkmcnt(0)
""")
    for i in range(4):
        a(f"global_load_dwordx4 v[{16+4*i}:{19+4*i}], v5, s[8:9] offset:{i*1024}")
    srd(a, 24, 22, 23, WS_BYTES)
    a(f"""
v_mul_u32_u24 v7, {4*1056}, v4
v_lshl_add_u32 v7, v1, 4, v7
s_mov_b32 s5, 0x3f803f80
""")
    for i in range(4):
        a(f"s_waitcnt vmcnt({3-i})")
        a(f"ds_write_b128 v7, v[{16+4*i}:{19+4*i}] offset:{i*1056}")
        a(f"v_dot2_f32_bf16 v{48+i}, v{16+4*i}, s5, 0")
        a(f"v_dot2_f32_bf16 v{52+i}, v{16+4*i}, v{16+4*i}, 0")
        for k in range(1, 4):
            a(f"v_dot2_f32_bf16 v{48+i}, v{16+4*i+k}, s5, v{48+i}")
            a(f"v_dot2_f32_bf16 v{52+i}, v{16+4*i+k}, v{16+4*i+k}, v{52+i}")
    for i in range(4):
        a(f"v_permlane32_swap_b32 v{48+i}, v{52+i}")
    for i in range(4):
        a(f"v_add_f32 v{48+i}, v{48+i}, v{52+i}")
    for i in range(2):
        a(f"v_permlane16_swap_b32 v{48+i}, v{50+i}")
    for i in range(2):
        a(f"v_add_f32 v{48+i}, v{48+i}, v{50+i}")
    for mod in ["quad_perm:[1,0,3,2]", "quad_perm:[2,3,0,1]", "row_half_mirror", "row_mirror"]:
        for i in range(2):
            a(f"v_add_f32 v{48+i}, v{48+i}, v{48+i} {mod}")
    a(f"""
v_and_b32 v8, 1, v1
v_cmp_eq_u32 vcc, 1, v8
v_bfe_u32 v9, v1, 4, 1
v_lshl_add_u32 v8, v9, 1, v8
v_cndmask_b32 v48, v48, v49, vcc
v_lshl_add_u32 v8, v4, 2, v8
s_lshl_b32 s4, s3, 5
v_add_u32 v8, s4, v8
v_lshlrev_b32 v8, 2, v8
v_lshrrev_b32 v9, 5, v1
v_lshl_add_u32 v8, v9, 13, v8
v_and_b32 v9, 15, v1
v_cmp_gt_u32 vcc, 2, v9
v_mov_b32 v49, 0
s_mov_b32 s5, {ST0}
s_mov_b32 s6, {ST2}
s_and_saveexec_b64 s[10:11], vcc
buffer_store_dword v48, v8, s[24:27], s5 offen
buffer_store_dword v49, v8, s[24:27], s6 offen sc1
s_mov_b64 exec, s[10:11]
v_cmp_gt_u32 vcc, 64, v0
s_lshl_b32 s5, s3, 8
s_add_u32 s5, s5, {BAR}
v_lshlrev_b32 v8, 2, v0
s_and_saveexec_b64 s[10:11], vcc
buffer_store_dword v49, v8, s[24:27], s5 offen sc1
s_mov_b64 exec, s[10:11]
s_waitcnt lgkmcnt(0)
s_barrier
v_lshrrev_b32 v8, 4, v1
v_bfe_u32 v9, v1, 2, 2
v_lshl_add_u32 v9, v8, 3, v9            ; row = 8g + r
v_mul_u32_u24 v9, 1056, v9
v_and_b32 v10, 3, v1
v_lshl_add_u32 v9, v10, 3, v9
v_lshl_add_u32 v9, v4, 7, v9
v_and_b32 v10, 15, v1
v_lshl_add_u32 v10, v4, 6, v10
v_lshlrev_b32 v10, 12, v10
v_lshl_add_u32 v10, v8, 4, v10
s_lshl_b32 s4, s3, 6
v_add_u32 v10, s4, v10
""")
    for db in range(4):
        r = 16 + 4 * db
        a(f"ds_read_b64_tr_b16 v[{r}:{r+1}], v9 offset:{db*32}")
        a(f"ds_read_b64_tr_b16 v[{r+2}:{r+3}], v9 offset:{db*32+4*1056}")
    for db in range(4):
        r = 16 + 4 * db
        a(f"s_mov_b32 s5, {XT0 + db*16*4096}")
        a(f"s_waitcnt lgkmcnt({6-2*db})")
        a(f"buffer_store_dwordx4 v[{r}:{r+3}], v10, s[24:27], s5 offen")
    a("s_endpgm")
    a(f"""
L_prep_w:
s_cmp_ge_u32 s2, {N_KGEN+N_XP+N_WGU}
s_cbranch_scc1 L_prep_wd
s_load_dwordx4 s[8:11], s[0:1], 80
s_sub_u32 s3, s2, {N_KGEN+N_XP}
s_lshr_b32 s4, s3, 4                    ; ct
s_and_b32 s5, s3, 15                    ; ks
v_lshrrev_b32 v1, 4, v0
v_and_b32 v2, 15, v0
s_lshl_b32 s6, s5, 5
v_add_u32 v3, s6, v1
s_movk_i32 s7, 2752
v_mul_lo_u32 v3, v3, s7
s_mul_i32 s6, s4, 192
v_lshl_add_u32 v3, v2, 4, v3
v_add_u32 v3, s6, v3
s_waitcnt lgkmcnt(0)
""")
    srd(a, 12, 8, 9, 512*1376*2)
    srd(a, 16, 10, 11, 512*1376*2)
    srd(a, 24, 22, 23, WS_BYTES)
    a(f"""
buffer_load_dwordx4 v[8:11], v3, s[12:15], 0 offen
buffer_load_dwordx4 v[12:15], v3, s[16:19], 0 offen
v_mul_u32_u24 v4, 272, v1
v_lshl_add_u32 v4, v2, 4, v4
v_bfe_u32 v5, v0, 1, 1
v_mul_u32_u24 v5, 8704, v5
v_bfe_u32 v6, v0, 2, 2
v_lshl_add_u32 v5, v6, 2, v5
v_and_b32 v6, 1, v0
v_lshl_add_u32 v5, v6, 1, v5
v_bfe_u32 v6, v0, 4, 2
v_mul_u32_u24 v6, {4*272}, v6
v_add_u32 v5, v5, v6
v_lshrrev_b32 v7, 6, v0
v_lshl_add_u32 v5, v7, 4, v5
s_waitcnt vmcnt(1)
ds_write_b128 v4, v[8:11]
s_waitcnt vmcnt(0)
ds_write_b128 v4, v[12:15] offset:8704
s_waitcnt lgkmcnt(0)
s_barrier
""")
    for rnd in range(2):
        for e in range(8):
            k = e if e < 4 else 16 + e - 4
            a(f"ds_read_u16 v{32+8*rnd+e}, v5 offset:{k*272 + rnd*128}")
    a(f"""
v_readfirstlane_b32 s6, v7
v_and_b32 v1, 63, v0
v_lshlrev_b32 v1, 4, v1
s_mul_i32 s7, s6, 11
s_lshr_b32 s7, s7, 5                    ; tt/3
s_mul_i32 s12, s7, 3
s_sub_u32 s12, s6, s12                  ; T
s_lshl_b32 s13, s4, 2
s_add_u32 s13, s13, s7
s_lshl_b32 s13, s13, 4
s_add_u32 s13, s13, s5
s_mul_i32 s13, s13, 3
s_add_u32 s13, s13, s12
s_lshl_b32 s13, s13, 10
s_add_u32 s13, s13, {WGU}
s_waitcnt lgkmcnt(8)
v_lshl_or_b32 v16, v33, 16, v32
v_lshl_or_b32 v17, v35, 16, v34
v_lshl_or_b32 v18, v37, 16, v36
v_lshl_or_b32 v19, v39, 16, v38
buffer_store_dwordx4 v[16:19], v1, s[24:27], s13 offen
s_cmp_ge_u32 s6, 4
s_cbranch_scc1 L_prep_end
s_add_u32 s6, s6, 8
s_mul_i32 s7, s6, 11
s_lshr_b32 s7, s7, 5
s_mul_i32 s12, s7, 3
s_sub_u32 s12, s6, s12
s_lshl_b32 s13, s4, 2
s_add_u32 s13, s13, s7
s_lshl_b32 s13, s13, 4
s_add_u32 s13, s13, s5
s_mul_i32 s13, s13, 3
s_add_u32 s13, s13, s12
s_lshl_b32 s13, s13, 10
s_add_u32 s13, s13, {WGU}
s_waitcnt lgkmcnt(0)
v_lshl_or_b32 v20, v41, 16, v40
v_lshl_or_b32 v21, v43, 16, v42
v_lshl_or_b32 v22, v45, 16, v44
v_lshl_or_b32 v23, v47, 16, v46
buffer_store_dwordx4 v[20:23], v1, s[24:27], s13 offen
s_endpgm
""")
    a(f"""
L_prep_wd:
s_cmp_ge_u32 s2, {N_KGEN+N_XP+N_WGU+N_WD}
s_cbranch_scc1 L_prep_cs
s_load_dwordx2 s[8:9], s[0:1], 96
s_sub_u32 s3, s2, {N_KGEN+N_XP+N_WGU}
s_lshr_b32 s4, s3, 1                    ; ks
s_and_b32 s5, s3, 1                     ; dhalf
v_lshrrev_b32 v1, 5, v0                 ; row 0..15 (+16)
v_and_b32 v2, 31, v0
s_lshl_b32 s6, s4, 15                   ; ks*32*1024
s_lshl_b32 s7, s5, 9
s_add_u32 s6, s6, s7
v_lshlrev_b32 v3, 10, v1
v_lshl_add_u32 v3, v2, 4, v3
v_add_u32 v3, s6, v3
v_add_u32 v4, 16384, v3
s_waitcnt lgkmcnt(0)
global_load_dwordx4 v[8:11], v3, s[8:9]
global_load_dwordx4 v[12:15], v4, s[8:9]
""")
    srd(a, 24, 22, 23, WS_BYTES)
    a(f"""
v_mul_u32_u24 v4, 528, v1
v_lshl_add_u32 v4, v2, 4, v4
v_and_b32 v5, 15, v0
v_lshlrev_b32 v5, 1, v5
v_bfe_u32 v6, v0, 4, 2
v_mul_u32_u24 v6, {2*528}, v6
v_add_u32 v5, v5, v6
v_lshrrev_b32 v7, 6, v0
v_lshl_add_u32 v5, v7, 6, v5
s_waitcnt vmcnt(1)
ds_write_b128 v4, v[8:11]
s_waitcnt vmcnt(0)
ds_write_b128 v4, v[12:15] offset:{16*528}
s_waitcnt lgkmcnt(0)
s_barrier
""")
    for rnd in range(2):
        for e in range(8):
            f = 8 * (e >> 1) + (e & 1)
            a(f"ds_read_u16 v{32+8*rnd+e}, v5 offset:{f*528 + rnd*32}")
    a(f"""
v_readfirstlane_b32 s6, v7
v_and_b32 v1, 63, v0
v_lshlrev_b32 v1, 4, v1
s_lshr_b32 s7, s6, 1                    ; nt>>2
s_lshl_b32 s12, s5, 2
s_add_u32 s7, s7, s12                   ; dblk
s_mul_i32 s7, s7, 43
s_add_u32 s7, s7, s4
s_lshl_b32 s7, s7, 2
s_and_b32 s12, s6, 1
s_lshl_b32 s12, s12, 1
s_add_u32 s7, s7, s12
s_lshl_b32 s7, s7, 10
s_add_u32 s7, s7, {WD}
s_waitcnt lgkmcnt(8)
v_lshl_or_b32 v16, v33, 16, v32
v_lshl_or_b32 v17, v35, 16, v34
v_lshl_or_b32 v18, v37, 16, v36
v_lshl_or_b32 v19, v39, 16, v38
buffer_store_dwordx4 v[16:19], v1, s[24:27], s7 offen
s_waitcnt lgkmcnt(0)
v_lshl_or_b32 v20, v41, 16, v40
v_lshl_or_b32 v21, v43, 16, v42
v_lshl_or_b32 v22, v45, 16, v44
v_lshl_or_b32 v23, v47, 16, v46
buffer_store_dwordx4 v[20:23], v1, s[24:27], s7 offen offset:1024
s_endpgm
""")
    a(f"""
L_prep_cs:
s_sub_u32 s3, s2, {N_KGEN+N_XP+N_WGU+N_WD}
s_and_b32 s4, s3, 1                     ; matrix
s_lshr_b32 s5, s3, 1
s_lshl_b32 s6, s4, 3
s_add_u32 s6, s6, 80
s_load_dwordx2 s[8:9], s[0:1], s6
v_and_b32 v1, 63, v0
v_lshrrev_b32 v2, 6, v0
s_movk_i32 s7, 2752
v_lshlrev_b32 v3, 6, v2
v_mul_lo_u32 v3, v3, s7
v_lshl_add_u32 v3, v1, 2, v3
s_lshl_b32 s10, s5, 8
v_add_u32 v3, s10, v3
s_waitcnt lgkmcnt(0)
""")
    srd(a, 12, 8, 9, 512*1376*2)
    srd(a, 24, 22, 23, WS_BYTES)
    a("""
v_mov_b32 v4, 0
v_mov_b32 v5, 0
s_mov_b32 s10, 0
s_mov_b32 s11, 0
L_cs_loop:""")
    for i in range(16):
        a(f"buffer_load_dword v{8+i}, v3, s[12:15], s10 offen\ns_add_u32 s10, s10, 2752")
    for i in range(16):
        a(f"s_waitcnt vmcnt({15-i})\nv_lshlrev_b32 v6, 16, v{8+i}\nv_and_b32 v7, 0xffff0000, v{8+i}\nv_add_f32 v4, v4, v6\nv_add_f32 v5, v5, v7")
    a(f"""
s_add_u32 s11, s11, 1
s_cmp_lt_u32 s11, 4
s_cbranch_scc1 L_cs_loop
v_lshlrev_b32 v6, 3, v0
ds_write_b64 v6, v[4:5]
s_waitcnt lgkmcnt(0)
s_barrier
v_cmp_gt_u32 vcc, 64, v0
s_and_saveexec_b64 s[16:17], vcc
s_cbranch_execz L_prep_end
""")
    for w in range(8):
        a(f"ds_read_b64 v[{8+2*w}:{9+2*w}], v6 offset:{w*512}")
    a("s_waitcnt lgkmcnt(0)")
    for w in range(1, 8):
        a(f"v_add_f32 v8, v8, v{8+2*w}\nv_add_f32 v9, v9, v{9+2*w}")
    a(f"""
s_lshl_b32 s10, s5, 9
s_lshl_b32 s11, s4, 13
s_add_u32 s10, s10, s11
s_add_u32 s10, s10, {CSUM}
buffer_store_dwordx2 v[8:9], v6, s[24:27], s10 offen
L_prep_end:
s_endpgm
""")

HEADER = open("interleave_layers__ssm_conv_s4__swiglu_ffn__prompt.s.ref").read().split("; Override launch")[0]

def main():
    a = A()
    launches = [("prep_kernel", PREP_WGS, 512, PREP_LDS)]
    kds = [kd("prep_kernel", 80)]
    gen_prep(a)
    import importlib
    for modname in (["gen_mega"] if int(os.environ.get("MEGA", "1")) else ["gen_conv", "gen_ffn"]):
        try:
            m = importlib.import_module(modname)
        except ImportError:
            continue
        m.emit(a, launches, kds)
    if len(sys.argv) > 2:
        order = sys.argv[2].split(",")
    out = HEADER
    order = ["prep_kernel", "mega_kernel", "conv1_kernel", "gateup1_kernel", "down1_kernel", "conv2_kernel", "gateup2_kernel", "down2_kernel"]
    ld = {l[0]: l for l in launches}
    for n in order:
        if n in ld:
            _, g, b, lds = ld[n]
            out += f"; @launch kernel={n} grid=({g},1,1) block=({b},1,1) lds={lds}\n"
    out += '.amdgcn_target "amdgcn-amd-amdhsa--gfx950"\n.text\n'
    out += a.text()
    out += '.section .rodata,"a"\n' + "".join(kds)
    path = sys.argv[1] if len(sys.argv) > 1 else "interleave_layers__ssm_conv_s4__swiglu_ffn__prompt.s"
    open(path, "w").write(out)
    print("wrote", path, len(out))

if __name__ == "__main__":
    sys.path.insert(0, "dev")
    sys.modules["gen"] = sys.modules["__main__"]
    main()
```

```python
import struct, sys, math

def f32bits(x):
    return struct.unpack("<I", struct.pack("<f", x))[0]

XT0 = 0x000000
XT1 = 0x200000
XT2 = 0x400000
XT3 = 0x600000
ST0 = 0x800000
ST2 = 0x810000
CSUM = 0x820000
BAR = 0x830000
KT  = 0x900000
WGU = 0xC00000
WD  = 0x1000000
HF  = 0x1200000
WS_BYTES = 268435456

LOG2E = 1.4426950408889634
INV2PI = 1.0 / (2 * math.pi)
C1 = struct.unpack("<f", struct.pack("<f", INV2PI))[0]
C2 = INV2PI - C1

class A:
    def __init__(self):
        self.l = []
    def __call__(self, s):
        for line in s.strip("\n").split("\n"):
            self.l.append("    " + line.strip() if not line.strip().endswith(":") else line.strip())
    def label(self, s):
        self.l.append(s + ":")
    def text(self):
        import hazard
        l = self.l
        if WGT:
            order = ["prep_kernel", "conv1_kernel", "gateup1_kernel", "down1_kernel", "conv2_kernel", "gateup2_kernel", "down2_kernel"]
            if int(os.environ.get("MEGA", "1")): order = ["prep_kernel", "mega_kernel"]
            out = []; cur = 0
            for x in l:
                if x.endswith("_kernel:"): cur = order.index(x[:-1])
                if x.strip() == "s_endpgm": out += ["    " + y for y in wgt_end(cur).split("\n")]
                else: out.append(x)
            l = out
        pol = os.environ.get("STPOL", "")
        if pol:
            l = [x + " " + pol if x.strip().startswith("buffer_store_dwordx4") else x for x in l]
        return "\n".join(hazard.fix(l)) + "\n"

def srd(a, d, lo, hi, nbytes):
    a(f"""s_mov_b32 s{d}, s{lo}
s_mov_b32 s{d+1}, s{hi}
s_mov_b32 s{d+2}, {nbytes}
s_mov_b32 s{d+3}, 0x00020000""")

import os
STAMP = int(os.environ.get("STAMP", "0"))
HP = int(os.environ.get("HP", "0"))
def stamp(a, i):
    if STAMP:
        a(f"s_memtime s[{60+2*i}:{61+2*i}]")
def stamp_dump(a, n, slot_sreg, wgsel=0):
    if not STAMP: return
    a(f"""s_waitcnt lgkmcnt(0)
s_mov_b64 exec, -1
s_cmp_lg_u32 s2, {wgsel}
s_cbranch_scc1 L_sd_{len(a.l)}
s_load_dwordx2 s[56:57], s[0:1], 112
s_lshl_b32 s58, s{slot_sreg}, 5
v_mov_b32 v1, s58
s_waitcnt lgkmcnt(0)""")
    lab = [x for x in a.l if x.strip().startswith("s_cbranch_scc1 L_sd_")][-1].split()[-1]
    for i in range(n):
        a(f"v_mov_b32 v2, s{60+2*i}\nglobal_store_dword v1, v2, s[56:57] offset:{4*i}")
    a(f"s_waitcnt vmcnt(0)\n{lab}:")

WGT = int(os.environ.get("WGT", "0"))
WGT_BASE = 0x8000000
_kidx = [0]
def kernel_head(a, name):
    a.l.append(f".globl {name}")
    a.l.append(".p2align 8")
    a.l.append(f".type {name},@function")
    a.l.append(f"{name}:")
    if WGT:
        a("s_memrealtime s[80:81]\ns_memtime s[82:83]\ns_mov_b32 s88, s2\ns_mov_b64 s[90:91], s[0:1]")

def wgt_end(name_idx):
    return f"""s_memrealtime s[84:85]
s_memtime s[86:87]
s_load_dwordx2 s[92:93], s[90:91], 120
s_mov_b64 exec, 1
v_lshrrev_b32 v1, 6, v0
s_waitcnt lgkmcnt(0)
v_readfirstlane_b32 s89, v1
s_lshl_b32 s88, s88, 4
s_add_u32 s88, s88, s89
s_lshl_b32 s88, s88, 4
s_add_u32 s88, s88, {WGT_BASE + name_idx * 0x100000}
v_mov_b32 v1, s88
v_mov_b32 v4, s80
v_mov_b32 v5, s84
v_mov_b32 v6, s82
v_mov_b32 v7, s86
global_store_dwordx4 v1, v[4:7], s[92:93]
s_endpgm"""

def kd(name, vgpr, sgpr=96, accum=None):
    accum = accum if accum is not None else (vgpr + 3) // 4 * 4
    return f""".p2align 6
.amdhsa_kernel {name}
  .amdhsa_next_free_vgpr {vgpr}
  .amdhsa_next_free_sgpr {sgpr}
  .amdhsa_accum_offset {accum}
  .amdhsa_group_segment_fixed_size 0
  .amdhsa_kernarg_size 128
  .amdhsa_user_sgpr_count 2
  .amdhsa_user_sgpr_kernarg_segment_ptr 1
  .amdhsa_system_sgpr_workgroup_id_x 1
.end_amdhsa_kernel
"""

N_KGEN = 256
N_XP = 64
N_WGU = 240
N_WD = 86
N_CS = 22
PREP_WGS = N_KGEN + N_XP + N_WGU + N_WD + N_CS
PREP_LDS = 33792

def gen_prep(a):
    nb = int(os.environ.get("DEGRADE", "0"))
    m16 = (0xffff << nb) & 0xffff
    DEGRADE = f"v_and_b32 v32, {m16 | (m16 << 16):#x}, v32\nv_and_b32 v33, {m16 | (m16 << 16):#x}, v33" if nb else ""
    kernel_head(a, "prep_kernel")
    a(f"""
s_load_dwordx2 s[22:23], s[0:1], 120
s_cmp_ge_u32 s2, {PREP_WGS}
s_cbranch_scc1 L_prep_end
s_cmp_ge_u32 s2, {N_KGEN}
s_cbranch_scc1 L_prep_notk
""")
    a(f"""
s_load_dwordx8 s[8:15], s[0:1], 8
s_load_dwordx4 s[16:19], s[0:1], 40
s_load_dwordx2 s[20:21], s[0:1], 56
v_lshrrev_b32 v1, 8, v0                 ; ch
v_and_b32 v2, 127, v0                   ; n
s_lshl_b32 s3, s2, 1
v_add_u32 v3, s3, v1                    ; d
v_lshlrev_b32 v4, 7, v3
v_add_u32 v4, v4, v2
v_lshlrev_b32 v4, 1, v4                 ; (d*128+n)*2
v_lshlrev_b32 v5, 1, v3                 ; d*2
v_lshlrev_b32 v6, 11, v1
v_lshl_add_u32 v6, v2, 4, v6
s_mov_b32 s30, {f32bits(LOG2E):#x}
s_mov_b32 s31, {f32bits(C1):#x}
v_lshrrev_b32 v7, 6, v0
{"s_memtime s[60:61]" if STAMP else ""}
s_waitcnt lgkmcnt(0)
v_readfirstlane_b32 s59, v7
{"s_memtime s[62:63]" if STAMP else ""}
global_load_ushort v16, v5, s[20:21]
global_load_ushort v10, v4, s[8:9]
global_load_ushort v11, v4, s[10:11]
global_load_ushort v12, v4, s[12:13]
global_load_ushort v13, v4, s[14:15]
global_load_ushort v14, v4, s[16:17]
global_load_ushort v15, v4, s[18:19]
""")
    srd(a, 24, 22, 23, WS_BYTES)
    a(f"""
v_and_b32 v1, 63, v0                    ; lane
v_and_b32 v2, 15, v0                    ; j / col
v_lshrrev_b32 v3, 4, v1                 ; kg / g
v_lshrrev_b32 v4, 6, v0                 ; wave
v_lshlrev_b32 v5, 3, v2
v_cvt_f32_u32 v40, v5                   ; lo = 8j
v_lshrrev_b32 v5, 3, v2
v_lshlrev_b32 v5, 7, v5
v_and_b32 v7, 7, v2
v_add_u32 v5, v5, v7
v_cvt_f32_u32 v41, v5                   ; hi0
v_lshrrev_b32 v5, 2, v2
v_lshlrev_b32 v5, 7, v5
v_and_b32 v7, 3, v2
v_lshl_add_u32 v5, v7, 1, v5
v_add_u32 v5, 256, v5                   ; j<8 variant
v_subrev_u32 v7, 8, v2
v_lshrrev_b32 v7, 1, v7
v_lshlrev_b32 v7, 7, v7
v_and_b32 v8, 1, v2
v_lshl_add_u32 v7, v8, 2, v7
v_add_u32 v7, 512, v7                   ; j>=8 variant
v_cmp_gt_u32 vcc, 8, v2
v_lshlrev_b32 v8, 7, v2
v_add_u32 v8, 1024, v8
v_cndmask_b32 v5, v7, v5, vcc
v_cvt_f32_u32 v42, v5                   ; hi1
v_cvt_f32_u32 v43, v8                   ; hi2
v_lshrrev_b32 v5, 2, v4
v_lshlrev_b32 v5, 11, v5
v_and_b32 v7, 3, v4
v_lshl_add_u32 v5, v7, 9, v5
v_lshl_add_u32 v44, v3, 6, v5
s_waitcnt vmcnt(6)
v_lshlrev_b32 v16, 16, v16
v_mul_f32 v16, s30, v16
v_exp_f32 v16, v16
s_waitcnt vmcnt(0)
v_lshlrev_b32 v10, 16, v10
v_lshlrev_b32 v11, 16, v11
v_lshlrev_b32 v12, 16, v12
v_lshlrev_b32 v13, 16, v13
v_lshlrev_b32 v14, 16, v14
v_lshlrev_b32 v15, 16, v15
v_cvt_pk_bf16_f32 v16, v16, v16
v_lshlrev_b32 v16, 16, v16
v_mul_f32 v20, v16, v10
v_mul_f32 v20, s30, v20                 ; are2
v_mul_f32 v21, v16, v11
v_mul_f32 v21, s31, v21
v_mul_f32 v12, v16, v12                 ; dBre
v_mul_f32 v13, v16, v13                 ; dBim
v_mul_f32 v22, v14, v12
v_fma_f32 v22, -v15, v13, v22           ; Wre
v_mul_f32 v23, v14, v13
v_fma_f32 v23, v15, v12, v23            ; Wim
ds_write_b128 v6, v[20:23]
{"s_memtime s[64:65]" if STAMP else ""}
s_waitcnt lgkmcnt(0)
s_barrier
{"s_memtime s[66:67]" if STAMP else ""}
s_mov_b32 s4, 0
L_kg_loop:
ds_read_b128 v[8:11], v44
ds_read_b128 v[12:15], v44 offset:16
ds_read_b128 v[16:19], v44 offset:32
ds_read_b128 v[20:23], v44 offset:48
v_add_u32 v44, 256, v44
s_waitcnt lgkmcnt(0)
""")
    PR = [8, 12, 16, 20]
    def evalset(P, bside, HI, LO):
        for i in range(4):
            a(f"v_mul_f32 v{24+i}, v{PR[i]}, v{P}")
            a(f"v_mul_f32 v{28+i}, v{PR[i]+1}, v{P}")
        for i in range(4):
            a(f"v_exp_f32 v{24+i}, v{24+i}")
            a(f"v_fract_f32 v{28+i}, v{28+i}")
        for i in range(4):
            a(f"v_cos_f32 v{32+i}, v{28+i}")
            a(f"v_sin_f32 v{28+i}, v{28+i}")
        if bside:
            for i in range(4):
                a(f"v_mul_f32 v{36}, v{PR[i]+2}, v{32+i}")
                a(f"v_mul_f32 v{37}, v{PR[i]+2}, v{28+i}")
                a(f"v_fma_f32 v{36}, -v{PR[i]+3}, v{28+i}, v{36}")
                a(f"v_fma_f32 v{37}, v{PR[i]+3}, v{32+i}, v{37}")
                a(f"v_mul_f32 v{32+i}, v{24+i}, v{36}")
                a(f"v_mul_f32 v{28+i}, -v{24+i}, v{37}")
        else:
            for i in range(4):
                a(f"v_mul_f32 v{32+i}, v{24+i}, v{32+i}")
                a(f"v_mul_f32 v{28+i}, v{24+i}, v{28+i}")
        for i in range(4):
            a(f"v_cvt_pk_bf16_f32 v{HI+i}, v{32+i}, v{28+i}")
        for i in range(4):
            a(f"v_lshlrev_b32 v{24+i}, 16, v{HI+i}")
            a(f"v_and_b32 v{LO+i}, 0xffff0000, v{HI+i}")
        for i in range(4):
            a(f"v_sub_f32 v{32+i}, v{32+i}, v{24+i}")
            a(f"v_sub_f32 v{28+i}, v{28+i}, v{LO+i}")
        for i in range(4):
            a(f"v_cvt_pk_bf16_f32 v{LO+i}, v{32+i}, v{28+i}")
    evalset(40, True, 60, 64)
    a("s_cmp_eq_u32 s4, 0\ns_cbranch_scc0 L_kg_acc")
    for i in range(12):
        a(f"v_mov_b32 v{48+i}, 0")
    a("L_kg_acc:")
    for p in range(3):
        acc = 48 + 4 * p
        HI = 68 if p % 2 == 0 else 72
        HI, LO = (68, 72)
        evalset(41 + p, False, HI, LO)
        a(f"v_mfma_f32_16x16x32_bf16 v[{acc}:{acc+3}], v[{HI}:{HI+3}], v[60:63], v[{acc}:{acc+3}]")
        a(f"v_mfma_f32_16x16x32_bf16 v[{acc}:{acc+3}], v[{HI}:{HI+3}], v[64:67], v[{acc}:{acc+3}]")
        a(f"v_mfma_f32_16x16x32_bf16 v[{acc}:{acc+3}], v[{LO}:{LO+3}], v[60:63], v[{acc}:{acc+3}]")
    a(f"""
s_add_u32 s4, s4, 1
s_cmp_lt_u32 s4, 2
s_cbranch_scc1 L_kg_loop
{"s_memtime s[68:69]" if STAMP else ""}
v_mul_u32_u24 v5, 3072, v4
v_add_u32 v5, 4096, v5
v_lshrrev_b32 v6, 1, v3
v_lshlrev_b32 v6, 7, v6
v_and_b32 v7, 1, v3
v_lshl_add_u32 v6, v7, 2, v6
v_lshl_add_u32 v6, v2, 3, v6            ; q tile0
v_lshl_add_u32 v30, v6, 2, v5
v_lshlrev_b32 v6, 6, v3
v_lshl_add_u32 v7, v2, 2, v6
v_add_u32 v7, 256, v7                   ; g<2
v_lshl_add_u32 v8, v2, 1, v6
v_add_u32 v8, 256, v8                   ; g>=2: 384+64(g-2)+2col
v_cmp_gt_u32 vcc, 2, v3
v_mov_b32 v9, 32
v_cndmask_b32 v7, v8, v7, vcc
v_cndmask_b32 v9, v9, 2, vcc
v_lshl_add_u32 v31, v7, 2, v5
v_add_u32 v7, v7, v9
v_lshl_add_u32 v32, v7, 2, v5
v_add_u32 v6, v6, v2
v_add_u32 v6, 512, v6
v_lshl_add_u32 v33, v6, 2, v5
ds_write_b32 v30, v48
ds_write_b32 v30, v49 offset:4
ds_write_b32 v30, v50 offset:8
ds_write_b32 v30, v51 offset:12
ds_write_b32 v31, v52
ds_write_b32 v31, v53 offset:4
ds_write_b32 v32, v54
ds_write_b32 v32, v55 offset:4
ds_write_b32 v33, v56
ds_write_b32 v33, v57 offset:64
ds_write_b32 v33, v58 offset:128
ds_write_b32 v33, v59 offset:192
v_lshrrev_b32 v1, 8, v0
v_and_b32 v2, 255, v0
v_mul_u32_u24 v6, 12288, v1
v_add_u32 v6, 4096, v6
v_lshlrev_b32 v13, 2, v2                ; idx0
v_cmp_gt_u32 vcc, 816, v13
v_mov_b32 v14, 943
v_mov_b32 v15, 513
v_mov_b32 v16, 775
v_mov_b32 v17, 385
v_cndmask_b32 v14, v14, v16, vcc
v_cndmask_b32 v15, v15, v17, vcc
s_movk_i32 s5, 616
v_cmp_gt_u32 s[6:7], s5, v13
s_movk_i32 s33, 384
s_movk_i32 s34, 514
s_movk_i32 s35, 256
s_movk_i32 s36, 127
""")
    for i in range(4):
        a(f"""
v_add_u32 v20, {i}, v13
v_sub_u32 v21, 575, v20                 ; l
v_bfe_u32 v22, v21, 1, 1
v_add_u32 v22, v22, v21
v_lshrrev_b32 v22, 1, v22
v_add_u32 v22, 128, v22
v_min_u32 v22, s33, v22
v_cmp_ge_u32 vcc, s35, v21
v_sub_u32 v23, v14, v20                 ; i (far)
v_cmp_ge_u32 s[8:9], s34, v21
v_cndmask_b32 v22, v22, v21, vcc        ; q near
v_cmp_ge_u32 s[10:11], s36, v23
v_add_u32 v23, v23, v15                 ; q far
v_cndmask_b32 v22, v23, v22, s[6:7]
s_and_b64 s[8:9], s[8:9], s[6:7]
s_andn2_b64 s[10:11], s[10:11], s[6:7]
s_or_b64 s[{40+2*i}:{41+2*i}], s[8:9], s[10:11]
v_min_u32 v22, 767, v22
v_lshl_add_u32 v{36+i}, v22, 2, v6
""")
    a("s_waitcnt lgkmcnt(0)\ns_barrier")
    stamp(a, 5)
    for i in range(4):
        for w in range(4):
            a(f"ds_read_b32 v{48+4*i+w}, v{36+i} offset:{w*3072}")
    a("s_waitcnt lgkmcnt(0)")
    for i in range(4):
        a(f"v_add_f32 v{48+4*i}, v{48+4*i}, v{49+4*i}")
        a(f"v_add_f32 v{50+4*i}, v{50+4*i}, v{51+4*i}")
    for i in range(4):
        a(f"v_add_f32 v{24+i}, v{48+4*i}, v{50+4*i}")
    for i in range(4):
        a(f"v_cndmask_b32 v{24+i}, 0, v{24+i}, s[{40+2*i}:{41+2*i}]")
    a(f"""
v_max3_f32 v7, abs(v24), abs(v25), abs(v26)
v_max_f32 v7, abs(v27), v7
v_max_f32 v7, v7, v7 quad_perm:[1,0,3,2]
v_max_f32 v7, v7, v7 quad_perm:[2,3,0,1]
v_max_f32 v7, v7, v7 row_half_mirror
v_max_f32 v7, v7, v7 row_mirror
v_lshrrev_b32 v8, 4, v0
v_lshlrev_b32 v8, 2, v8
ds_write_b32 v8, v7 offset:28672
v_lshlrev_b32 v28, 6, v1
s_waitcnt lgkmcnt(0)
s_barrier
ds_read_b128 v[8:11], v28 offset:28672
ds_read_b128 v[12:15], v28 offset:28688
ds_read_b128 v[16:19], v28 offset:28704
ds_read_b128 v[20:23], v28 offset:28720
v_add_u32 v3, s3, v1
v_lshlrev_b32 v3, 12, v3
v_lshl_add_u32 v3, v2, 3, v3
s_mov_b32 s5, {KT}
v_cmp_eq_u32 vcc, 254, v2
s_movk_i32 s33, 162
v_cmp_eq_u32 s[6:7], s33, v2
s_waitcnt lgkmcnt(0)
v_max3_f32 v8, v8, v9, v10
v_max3_f32 v11, v11, v12, v13
v_max3_f32 v14, v14, v15, v16
v_max3_f32 v17, v17, v18, v19
v_max3_f32 v20, v20, v21, v22
v_max3_f32 v8, v8, v11, v14
v_max3_f32 v17, v17, v20, v23
v_max_f32 v10, v8, v17
v_lshrrev_b32 v10, 23, v10
v_max_u32 v10, 40, v10
v_min_u32 v10, 250, v10
v_sub_u32 v11, 268, v10
v_lshlrev_b32 v11, 23, v11              ; scale = 2^(14-e)
v_subrev_u32 v12, 24, v10
v_lshlrev_b32 v12, 23, v12
v_mul_f32 v24, v24, v11
v_mul_f32 v25, v25, v11
v_mul_f32 v26, v26, v11
v_mul_f32 v27, v27, v11
v_cvt_pk_f16_f32 v32, v24, v25
v_cvt_pk_f16_f32 v33, v26, v27
""")
    if HP:
        a("""
v_cvt_f32_f16 v34, v32
v_cvt_f32_f16 v35, v32 src0_sel:WORD_1
v_cvt_f32_f16 v36, v33
v_cvt_f32_f16 v37, v33 src0_sel:WORD_1
v_sub_f32 v34, v24, v34
v_sub_f32 v35, v25, v35
v_sub_f32 v36, v26, v36
v_sub_f32 v37, v27, v37
v_cvt_pk_f16_f32 v34, v34, v35
v_cvt_pk_f16_f32 v35, v36, v37
buffer_store_dwordx2 v[34:35], v3, s[24:27], s5 offen offset:2048
""")
    a(f"""
v_cndmask_b32 v32, v32, v12, vcc
s_andn2_b64 exec, exec, vcc
buffer_store_dwordx2 v[32:33], v3, s[24:27], s5 offen
s_mov_b64 exec, vcc
buffer_store_dword v32, v3, s[24:27], s5 offen
s_mov_b64 exec, s[6:7]
buffer_store_dword v24, v3, s[24:27], s5 offen offset:{2036 - 162*8}
""")
    stamp(a, 6)
    stamp_dump(a, 7, 59)
    a("s_endpgm")
    a(f"""
L_prep_notk:
s_setprio 3
s_cmp_ge_u32 s2, {N_KGEN+N_XP}
s_cbranch_scc1 L_prep_w
s_load_dwordx2 s[8:9], s[0:1], 0
s_sub_u32 s3, s2, {N_KGEN}               ; block
v_and_b32 v1, 63, v0
v_lshrrev_b32 v4, 6, v0                 ; wave
s_lshl_b32 s4, s3, 15                   ; t0*1024
v_lshlrev_b32 v5, 12, v4
v_lshl_add_u32 v5, v1, 4, v5
v_add_u32 v5, s4, v5
s_waitcnt lgkmcnt(0)
""")
    for i in range(4):
        a(f"global_load_dwordx4 v[{16+4*i}:{19+4*i}], v5, s[8:9] offset:{i*1024}")
    srd(a, 24, 22, 23, WS_BYTES)
    a(f"""
v_mul_u32_u24 v7, {4*1056}, v4
v_lshl_add_u32 v7, v1, 4, v7
s_mov_b32 s5, 0x3f803f80
""")
    for i in range(4):
        a(f"s_waitcnt vmcnt({3-i})")
        a(f"ds_write_b128 v7, v[{16+4*i}:{19+4*i}] offset:{i*1056}")
        a(f"v_dot2_f32_bf16 v{48+i}, v{16+4*i}, s5, 0")
        a(f"v_dot2_f32_bf16 v{52+i}, v{16+4*i}, v{16+4*i}, 0")
        for k in range(1, 4):
            a(f"v_dot2_f32_bf16 v{48+i}, v{16+4*i+k}, s5, v{48+i}")
            a(f"v_dot2_f32_bf16 v{52+i}, v{16+4*i+k}, v{16+4*i+k}, v{52+i}")
    for i in range(4):
        a(f"v_permlane32_swap_b32 v{48+i}, v{52+i}")
    for i in range(4):
        a(f"v_add_f32 v{48+i}, v{48+i}, v{52+i}")
    for i in range(2):
        a(f"v_permlane16_swap_b32 v{48+i}, v{50+i}")
    for i in range(2):
        a(f"v_add_f32 v{48+i}, v{48+i}, v{50+i}")
    for mod in ["quad_perm:[1,0,3,2]", "quad_perm:[2,3,0,1]", "row_half_mirror", "row_mirror"]:
        for i in range(2):
            a(f"v_add_f32 v{48+i}, v{48+i}, v{48+i} {mod}")
    a(f"""
v_and_b32 v8, 1, v1
v_cmp_eq_u32 vcc, 1, v8
v_bfe_u32 v9, v1, 4, 1
v_lshl_add_u32 v8, v9, 1, v8
v_cndmask_b32 v48, v48, v49, vcc
v_lshl_add_u32 v8, v4, 2, v8
s_lshl_b32 s4, s3, 5
v_add_u32 v8, s4, v8
v_lshlrev_b32 v8, 2, v8
v_lshrrev_b32 v9, 5, v1
v_lshl_add_u32 v8, v9, 13, v8
v_and_b32 v9, 15, v1
v_cmp_gt_u32 vcc, 2, v9
v_mov_b32 v49, 0
s_mov_b32 s5, {ST0}
s_mov_b32 s6, {ST2}
s_and_saveexec_b64 s[10:11], vcc
buffer_store_dword v48, v8, s[24:27], s5 offen
buffer_store_dword v49, v8, s[24:27], s6 offen sc1
s_mov_b64 exec, s[10:11]
v_cmp_gt_u32 vcc, 64, v0
s_lshl_b32 s5, s3, 8
s_add_u32 s5, s5, {BAR}
v_lshlrev_b32 v8, 2, v0
s_and_saveexec_b64 s[10:11], vcc
buffer_store_dword v49, v8, s[24:27], s5 offen sc1
s_mov_b64 exec, s[10:11]
s_waitcnt lgkmcnt(0)
s_barrier
v_lshrrev_b32 v8, 4, v1
v_bfe_u32 v9, v1, 2, 2
v_lshl_add_u32 v9, v8, 3, v9            ; row = 8g + r
v_mul_u32_u24 v9, 1056, v9
v_and_b32 v10, 3, v1
v_lshl_add_u32 v9, v10, 3, v9
v_lshl_add_u32 v9, v4, 7, v9
v_and_b32 v10, 15, v1
v_lshl_add_u32 v10, v4, 6, v10
v_lshlrev_b32 v10, 12, v10
v_lshl_add_u32 v10, v8, 4, v10
s_lshl_b32 s4, s3, 6
v_add_u32 v10, s4, v10
""")
    for db in range(4):
        r = 16 + 4 * db
        a(f"ds_read_b64_tr_b16 v[{r}:{r+1}], v9 offset:{db*32}")
        a(f"ds_read_b64_tr_b16 v[{r+2}:{r+3}], v9 offset:{db*32+4*1056}")
    for db in range(4):
        r = 16 + 4 * db
        a(f"s_mov_b32 s5, {XT0 + db*16*4096}")
        a(f"s_waitcnt lgkmcnt({6-2*db})")
        a(f"buffer_store_dwordx4 v[{r}:{r+3}], v10, s[24:27], s5 offen")
    a("s_endpgm")
    a(f"""
L_prep_w:
s_cmp_ge_u32 s2, {N_KGEN+N_XP+N_WGU}
s_cbranch_scc1 L_prep_wd
s_load_dwordx4 s[8:11], s[0:1], 80
s_sub_u32 s3, s2, {N_KGEN+N_XP}
s_lshr_b32 s4, s3, 4                    ; ct
s_and_b32 s5, s3, 15                    ; ks
v_lshrrev_b32 v1, 4, v0
v_and_b32 v2, 15, v0
s_lshl_b32 s6, s5, 5
v_add_u32 v3, s6, v1
s_movk_i32 s7, 2752
v_mul_lo_u32 v3, v3, s7
s_mul_i32 s6, s4, 192
v_lshl_add_u32 v3, v2, 4, v3
v_add_u32 v3, s6, v3
s_waitcnt lgkmcnt(0)
""")
    srd(a, 12, 8, 9, 512*1376*2)
    srd(a, 16, 10, 11, 512*1376*2)
    srd(a, 24, 22, 23, WS_BYTES)
    a(f"""
buffer_load_dwordx4 v[8:11], v3, s[12:15], 0 offen
buffer_load_dwordx4 v[12:15], v3, s[16:19], 0 offen
v_mul_u32_u24 v4, 272, v1
v_lshl_add_u32 v4, v2, 4, v4
v_bfe_u32 v5, v0, 1, 1
v_mul_u32_u24 v5, 8704, v5
v_bfe_u32 v6, v0, 2, 2
v_lshl_add_u32 v5, v6, 2, v5
v_and_b32 v6, 1, v0
v_lshl_add_u32 v5, v6, 1, v5
v_bfe_u32 v6, v0, 4, 2
v_mul_u32_u24 v6, {4*272}, v6
v_add_u32 v5, v5, v6
v_lshrrev_b32 v7, 6, v0
v_lshl_add_u32 v5, v7, 4, v5
s_waitcnt vmcnt(1)
ds_write_b128 v4, v[8:11]
s_waitcnt vmcnt(0)
ds_write_b128 v4, v[12:15] offset:8704
s_waitcnt lgkmcnt(0)
s_barrier
""")
    for rnd in range(2):
        for e in range(8):
            k = e if e < 4 else 16 + e - 4
            a(f"ds_read_u16 v{32+8*rnd+e}, v5 offset:{k*272 + rnd*128}")
    a(f"""
v_readfirstlane_b32 s6, v7
v_and_b32 v1, 63, v0
v_lshlrev_b32 v1, 4, v1
s_mul_i32 s7, s6, 11
s_lshr_b32 s7, s7, 5                    ; tt/3
s_mul_i32 s12, s7, 3
s_sub_u32 s12, s6, s12                  ; T
s_lshl_b32 s13, s4, 2
s_add_u32 s13, s13, s7
s_lshl_b32 s13, s13, 4
s_add_u32 s13, s13, s5
s_mul_i32 s13, s13, 3
s_add_u32 s13, s13, s12
s_lshl_b32 s13, s13, 10
s_add_u32 s13, s13, {WGU}
s_waitcnt lgkmcnt(8)
v_lshl_or_b32 v16, v33, 16, v32
v_lshl_or_b32 v17, v35, 16, v34
v_lshl_or_b32 v18, v37, 16, v36
v_lshl_or_b32 v19, v39, 16, v38
buffer_store_dwordx4 v[16:19], v1, s[24:27], s13 offen
s_cmp_ge_u32 s6, 4
s_cbranch_scc1 L_prep_end
s_add_u32 s6, s6, 8
s_mul_i32 s7, s6, 11
s_lshr_b32 s7, s7, 5
s_mul_i32 s12, s7, 3
s_sub_u32 s12, s6, s12
s_lshl_b32 s13, s4, 2
s_add_u32 s13, s13, s7
s_lshl_b32 s13, s13, 4
s_add_u32 s13, s13, s5
s_mul_i32 s13, s13, 3
s_add_u32 s13, s13, s12
s_lshl_b32 s13, s13, 10
s_add_u32 s13, s13, {WGU}
s_waitcnt lgkmcnt(0)
v_lshl_or_b32 v20, v41, 16, v40
v_lshl_or_b32 v21, v43, 16, v42
v_lshl_or_b32 v22, v45, 16, v44
v_lshl_or_b32 v23, v47, 16, v46
buffer_store_dwordx4 v[20:23], v1, s[24:27], s13 offen
s_endpgm
""")
    a(f"""
L_prep_wd:
s_cmp_ge_u32 s2, {N_KGEN+N_XP+N_WGU+N_WD}
s_cbranch_scc1 L_prep_cs
s_load_dwordx2 s[8:9], s[0:1], 96
s_sub_u32 s3, s2, {N_KGEN+N_XP+N_WGU}
s_lshr_b32 s4, s3, 1                    ; ks
s_and_b32 s5, s3, 1                     ; dhalf
v_lshrrev_b32 v1, 5, v0                 ; row 0..15 (+16)
v_and_b32 v2, 31, v0
s_lshl_b32 s6, s4, 15                   ; ks*32*1024
s_lshl_b32 s7, s5, 9
s_add_u32 s6, s6, s7
v_lshlrev_b32 v3, 10, v1
v_lshl_add_u32 v3, v2, 4, v3
v_add_u32 v3, s6, v3
v_add_u32 v4, 16384, v3
s_waitcnt lgkmcnt(0)
global_load_dwordx4 v[8:11], v3, s[8:9]
global_load_dwordx4 v[12:15], v4, s[8:9]
""")
    srd(a, 24, 22, 23, WS_BYTES)
    a(f"""
v_mul_u32_u24 v4, 528, v1
v_lshl_add_u32 v4, v2, 4, v4
v_and_b32 v5, 15, v0
v_lshlrev_b32 v5, 1, v5
v_bfe_u32 v6, v0, 4, 2
v_mul_u32_u24 v6, {2*528}, v6
v_add_u32 v5, v5, v6
v_lshrrev_b32 v7, 6, v0
v_lshl_add_u32 v5, v7, 6, v5
s_waitcnt vmcnt(1)
ds_write_b128 v4, v[8:11]
s_waitcnt vmcnt(0)
ds_write_b128 v4, v[12:15] offset:{16*528}
s_waitcnt lgkmcnt(0)
s_barrier
""")
    for rnd in range(2):
        for e in range(8):
            f = 8 * (e >> 1) + (e & 1)
            a(f"ds_read_u16 v{32+8*rnd+e}, v5 offset:{f*528 + rnd*32}")
    a(f"""
v_readfirstlane_b32 s6, v7
v_and_b32 v1, 63, v0
v_lshlrev_b32 v1, 4, v1
s_lshr_b32 s7, s6, 1                    ; nt>>2
s_lshl_b32 s12, s5, 2
s_add_u32 s7, s7, s12                   ; dblk
s_mul_i32 s7, s7, 43
s_add_u32 s7, s7, s4
s_lshl_b32 s7, s7, 2
s_and_b32 s12, s6, 1
s_lshl_b32 s12, s12, 1
s_add_u32 s7, s7, s12
s_lshl_b32 s7, s7, 10
s_add_u32 s7, s7, {WD}
s_waitcnt lgkmcnt(8)
v_lshl_or_b32 v16, v33, 16, v32
v_lshl_or_b32 v17, v35, 16, v34
v_lshl_or_b32 v18, v37, 16, v36
v_lshl_or_b32 v19, v39, 16, v38
buffer_store_dwordx4 v[16:19], v1, s[24:27], s7 offen
s_waitcnt lgkmcnt(0)
v_lshl_or_b32 v20, v41, 16, v40
v_lshl_or_b32 v21, v43, 16, v42
v_lshl_or_b32 v22, v45, 16, v44
v_lshl_or_b32 v23, v47, 16, v46
buffer_store_dwordx4 v[20:23], v1, s[24:27], s7 offen offset:1024
s_endpgm
""")
    a(f"""
L_prep_cs:
s_sub_u32 s3, s2, {N_KGEN+N_XP+N_WGU+N_WD}
s_and_b32 s4, s3, 1                     ; matrix
s_lshr_b32 s5, s3, 1
s_lshl_b32 s6, s4, 3
s_add_u32 s6, s6, 80
s_load_dwordx2 s[8:9], s[0:1], s6
v_and_b32 v1, 63, v0
v_lshrrev_b32 v2, 6, v0
s_movk_i32 s7, 2752
v_lshlrev_b32 v3, 6, v2
v_mul_lo_u32 v3, v3, s7
v_lshl_add_u32 v3, v1, 2, v3
s_lshl_b32 s10, s5, 8
v_add_u32 v3, s10, v3
s_waitcnt lgkmcnt(0)
""")
    srd(a, 12, 8, 9, 512*1376*2)
    srd(a, 24, 22, 23, WS_BYTES)
    a("""
v_mov_b32 v4, 0
v_mov_b32 v5, 0
s_mov_b32 s10, 0
s_mov_b32 s11, 0
L_cs_loop:""")
    for i in range(16):
        a(f"buffer_load_dword v{8+i}, v3, s[12:15], s10 offen\ns_add_u32 s10, s10, 2752")
    for i in range(16):
        a(f"s_waitcnt vmcnt({15-i})\nv_lshlrev_b32 v6, 16, v{8+i}\nv_and_b32 v7, 0xffff0000, v{8+i}\nv_add_f32 v4, v4, v6\nv_add_f32 v5, v5, v7")
    a(f"""
s_add_u32 s11, s11, 1
s_cmp_lt_u32 s11, 4
s_cbranch_scc1 L_cs_loop
v_lshlrev_b32 v6, 3, v0
ds_write_b64 v6, v[4:5]
s_waitcnt lgkmcnt(0)
s_barrier
v_cmp_gt_u32 vcc, 64, v0
s_and_saveexec_b64 s[16:17], vcc
s_cbranch_execz L_prep_end
""")
    for w in range(8):
        a(f"ds_read_b64 v[{8+2*w}:{9+2*w}], v6 offset:{w*512}")
    a("s_waitcnt lgkmcnt(0)")
    for w in range(1, 8):
        a(f"v_add_f32 v8, v8, v{8+2*w}\nv_add_f32 v9, v9, v{9+2*w}")
    a(f"""
s_lshl_b32 s10, s5, 9
s_lshl_b32 s11, s4, 13
s_add_u32 s10, s10, s11
s_add_u32 s10, s10, {CSUM}
buffer_store_dwordx2 v[8:9], v6, s[24:27], s10 offen
L_prep_end:
s_endpgm
""")

HEADER = open("interleave_layers__ssm_conv_s4__swiglu_ffn__prompt.s.ref").read().split("; Override launch")[0]

def main():
    a = A()
    launches = [("prep_kernel", PREP_WGS, 512, PREP_LDS)]
    kds = [kd("prep_kernel", 80)]
    gen_prep(a)
    import importlib
    for modname in (["gen_mega"] if int(os.environ.get("MEGA", "1")) else ["gen_conv", "gen_ffn"]):
        try:
            m = importlib.import_module(modname)
        except ImportError:
            continue
        m.emit(a, launches, kds)
    if len(sys.argv) > 2:
        order = sys.argv[2].split(",")
    out = HEADER
    order = ["prep_kernel", "mega_kernel", "conv1_kernel", "gateup1_kernel", "down1_kernel", "conv2_kernel", "gateup2_kernel", "down2_kernel"]
    ld = {l[0]: l for l in launches}
    for n in order:
        if n in ld:
            _, g, b, lds = ld[n]
            out += f"; @launch kernel={n} grid=({g},1,1) block=({b},1,1) lds={lds}\n"
    out += '.amdgcn_target "amdgcn-amd-amdhsa--gfx950"\n.text\n'
    out += a.text()
    out += '.section .rodata,"a"\n' + "".join(kds)
    path = sys.argv[1] if len(sys.argv) > 1 else "interleave_layers__ssm_conv_s4__swiglu_ffn__prompt.s"
    open(path, "w").write(out)
    print("wrote", path, len(out))

if __name__ == "__main__":
    sys.path.insert(0, "dev")
    sys.modules["gen"] = sys.modules["__main__"]
    main()
```
